```python
import torch

def _softmax(x, axis=-1):
    return torch.softmax(x, dim=axis)
def _gelu(x):
    return torch.nn.functional.gelu(x, approximate="tanh")
def _silu(x):
    return torch.nn.functional.silu(x)
def _sigmoid(x):
    return torch.sigmoid(x)
def _layernorm(x, axis=-1, eps=1e-5):
    m = x.mean(dim=axis, keepdim=True)
    v = x.var(dim=axis, keepdim=True, unbiased=False)
    return (x - m) / torch.sqrt(v + eps)
def _scatter_add(tgt, idx, src, axis=0):
    return tgt.clone().index_add_(axis, idx, src)
def _segment_sum(src, seg, n):
    out = torch.zeros((n,) + src.shape[1:], dtype=src.dtype)
    return out.index_add_(0, seg, src)
def _pad(x, pw):
    flat = tuple(v for pair in reversed(pw) for v in pair)
    return torch.nn.functional.pad(x, flat)

kernel_name = 'concat_heads__linear_attn_block__ssm_conv_s4__prompt'

def setup_inputs():

    _w = (lambda a: (lambda t: t.to(torch.bfloat16) if t.is_floating_point() else t)(torch.as_tensor(a)))
    def _A_setup():
        B, S, D = 1, 2048, 1024
        return {
            "x": _w((lambda *s: torch.randn(*s, dtype=torch.bfloat16) * 0.05)(B, S, D)),
            "wqkv": _w((lambda *s: torch.randn(*s, dtype=torch.bfloat16) * 0.8)(D, 3 * D)),
            "wo": _w((lambda *s: torch.randn(*s, dtype=torch.bfloat16) * 0.05)(D, D)),
        }
    _A_in = _A_setup()

    def _B_setup():
        B, L, D, N = 1, 2048, 1024, 128
        A_re = -(lambda _x: torch.exp(torch.as_tensor(_x)))((lambda *s: torch.randn(*s, dtype=torch.bfloat16) * 6.4)(D, N))
        A_im = torch.pi * (lambda *s: torch.randn(*s, dtype=torch.bfloat16) * 0.05)(D, N)
        B_re = (lambda *s: torch.randn(*s, dtype=torch.bfloat16) * 0.2)(D, N)
        B_im = (lambda *s: torch.randn(*s, dtype=torch.bfloat16) * 0.2)(D, N)
        C_re = (lambda *s: torch.randn(*s, dtype=torch.bfloat16) * 0.2)(D, N)
        C_im = (lambda *s: torch.randn(*s, dtype=torch.bfloat16) * 0.2)(D, N)
        log_dt = (lambda *s: torch.randn(*s, dtype=torch.bfloat16) * 0.05)(D) * 0.5 - 4.0
        Dskip = (lambda *s: torch.randn(*s, dtype=torch.bfloat16) * 0.05)(D)
        return {
            "u": _w((lambda *s: torch.randn(*s, dtype=torch.bfloat16) * 0.05)(B, L, D)),
            "A_re": _w(A_re),
            "A_im": _w(A_im),
            "B_re": _w(B_re),
            "B_im": _w(B_im),
            "C_re": _w(C_re),
            "C_im": _w(C_im),
            "log_dt": _w(log_dt),
            "Dskip": _w(Dskip),
        }
    _B_in = _B_setup()

    return {
        "A_x": _A_in["x"],
        "A_wqkv": _A_in["wqkv"],
        "A_wo": _A_in["wo"],
        "B_u": _B_in["u"],
        "B_A_re": _B_in["A_re"],
        "B_A_im": _B_in["A_im"],
        "B_B_re": _B_in["B_re"],
        "B_B_im": _B_in["B_im"],
        "B_C_re": _B_in["C_re"],
        "B_C_im": _B_in["C_im"],
        "B_log_dt": _B_in["log_dt"],
        "B_Dskip": _B_in["Dskip"],
    }

def reference(A_x, A_wqkv, A_wo, B_u, B_A_re, B_A_im, B_B_re, B_B_im, B_C_re, B_C_im, B_log_dt, B_Dskip):
    def _A_ref(x, wqkv, wo):
        B, S, D = x.shape
        H = 32; Dh = D // H
        qkv = (lambda x, *d: x.permute(*d))((x @ wqkv).reshape(B, S, 3, H, Dh), 2, 0, 3, 1, 4)
        q, k, v = qkv[0], qkv[1], qkv[2]
        phi = lambda t: torch.where(t > 0, t + 1, torch.exp(t)) + 1e-6
        pq, pk = phi(q), phi(k)
        kv = torch.einsum("bhsd,bhse->bhde", pk, v)
        z = torch.einsum("bhsd->bhd", pk)
        num = torch.einsum("bhqd,bhde->bhqe", pq, kv)
        den = torch.einsum("bhqd,bhd->bhq", pq, z)[..., None] + 1e-6
        o = num / den
        return (lambda x, *d: x.permute(*d))(o, 0, 2, 1, 3).reshape(B, S, D) @ wo

    def _B_ref(u, A_re, A_im, B_re, B_im, C_re, C_im, log_dt, Dskip):
        Bsz, L, D = u.shape
        dt = torch.exp(log_dt)[:, None]
        A = A_re + 1j * A_im
        Bc = B_re + 1j * B_im
        Cc = C_re + 1j * C_im
        logdA = dt * A
        dB = dt * Bc
        l = (lambda x, dt: x.to(dt))(torch.arange(L), A_re.dtype)
        P = torch.exp(logdA[:, :, None] * l[None, None, :])
        K = torch.einsum("dn,dnl,dn->dl", Cc, P, dB).real
        L2 = 2 * L
        Kp = _pad(K, ((0, 0), (0, L)))
        up = (lambda x, *d: x.permute(*d))(u, 0, 2, 1)
        up = _pad(up, ((0, 0), (0, 0), (0, L)))
        Kf = (lambda x, axes=(-2,-1): torch.fft.rfft2(x.float(), dim=axes))(Kp[:, None, :], axes=(-2, -1))
        Uf = (lambda x, axes=(-2,-1): torch.fft.rfft2(x.float(), dim=axes))(up[:, :, None, :], axes=(-2, -1))
        Yf = Uf * Kf[None, :, :, :]
        y = (lambda x, s, axes=(-2,-1): torch.fft.irfft2(x, s=s, dim=axes).to(torch.bfloat16))(Yf, (1, L2), axes=(-2, -1))[:, :, 0, :L]
        y = (lambda x, *d: x.permute(*d))(y, 0, 2, 1) + u * Dskip[None, None, :]
        return y

    a = _A_ref(A_x, A_wqkv, A_wo)
    b = _B_ref(B_u, B_A_re, B_A_im, B_B_re, B_B_im, B_C_re, B_C_im, B_log_dt, B_Dskip)
    return torch.concatenate([a, b], axis=-1)
```

```python
class Asm:
    def __init__(self):
        self.lines = []
        self.uid = 0
    def __call__(self, s=''):
        for l in s.split('\n'):
            self.lines.append('    ' + l.strip() if l.strip() and not l.strip().endswith(':') else l.strip())
    def label(self, name):
        self.lines.append(name + ':')
    def newlabel(self, base='L'):
        self.uid += 1
        return f'{base}_{self.uid}'
    def text(self):
        return '\n'.join(self.lines) + '\n'

def kernel_header(name):
    return f'''.globl {name}
.p2align 8
.type {name},@function
{name}:
'''
def kernel_desc(name, vgpr=256, sgpr=102, accum=256, extra=''):
    return f'''.p2align 6
.amdhsa_kernel {name}
  .amdhsa_next_free_vgpr {vgpr}
  .amdhsa_next_free_sgpr {sgpr}
  .amdhsa_accum_offset {accum}
  .amdhsa_group_segment_fixed_size 0
  .amdhsa_kernarg_size 120
  .amdhsa_user_sgpr_count 2
  .amdhsa_user_sgpr_kernarg_segment_ptr 1
  .amdhsa_system_sgpr_workgroup_id_x 1
{extra}.end_amdhsa_kernel
'''
def file_text(launch_lines, kernels):
    s = ''.join(l + '\n' for l in launch_lines)
    s += '.amdgcn_target "amdgcn-amd-amdhsa--gfx950"\n.text\n'
    for name, body, desc in kernels:
        s += kernel_header(name) + body
    s += '.section .rodata,"a"\n'
    for name, body, desc in kernels:
        s += desc
    return s
```

```python
import re
TRANS = ('v_exp_f32','v_log_f32','v_rcp_f32','v_rsq_f32','v_sqrt_f32','v_sin_f32','v_cos_f32','v_rcp_iflag_f32')
def regs(tok):
    tok = tok.strip()
    m = re.fullmatch(r'-?\|?(?:abs\()?([vsa])(\d+)\)?\|?', tok)
    if m: return {(m.group(1), int(m.group(2)))}
    m = re.fullmatch(r'-?([vsa])\[(\d+):(\d+)\]', tok)
    if m: return {(m.group(1), i) for i in range(int(m.group(2)), int(m.group(3))+1)}
    if tok == 'vcc': return {('s','vcc')}
    if tok in ('vcc_lo','vcc_hi'): return {('s','vcc')}
    if tok == 'exec' or tok in ('exec_lo','exec_hi'): return {('s','exec')}
    if tok == 'm0': return {('s','m0')}
    return set()
class I:
    def __init__(self, line):
        self.line = line
        s = line.split(';')[0].strip()
        self.label = s[:-1] if s.endswith(':') else None
        self.isinst = bool(s) and not self.label and not s.startswith('.')
        self.dst, self.src, self.srcC = set(), set(), set()
        self.kind = None; self.states = 0; self.mn = ''
        if not self.isinst: return
        parts = s.split(None, 1)
        mn = parts[0]; self.mn = mn
        base = re.sub(r'_(e32|e64|dpp|sdwa)$', '', mn); self.base = base
        rest = parts[1] if len(parts) > 1 else ''
        ops = [o.strip() for o in re.split(r',(?![^\[]*\])', rest)] if rest else []
        mods = ''
        if ops:
            sp = ops[-1].split(None, 1)
            ops[-1] = sp[0]; mods = sp[1] if len(sp) > 1 else ''
        self.ops, self.mods = ops, mods
        self.states = 1
        R = [regs(o) for o in ops]
        if mn == 's_nop': self.states = int(ops[0], 0) + 1; self.kind = 'salu'; return
        if mn.startswith('v_mfma'):
            self.kind = 'mfma'; self.passes = 8 if '32x32' in mn else 4
            self.dst = R[0]; self.src = R[1] | R[2]; self.srcC = R[3]; return
        if mn.startswith('v_'):
            self.kind = 'valu'
            self.dpp = ('row_' in mods or 'quad_perm' in mods or 'wave_' in mods or mn.endswith('_dpp'))
            if base.startswith('v_permlane') or base == 'v_swap_b32':
                self.dst = R[0] | R[1]; self.src = R[0] | R[1]
            elif re.match(r'v_(add|sub|subrev|addc|subb|subbrev)_co_', base) or base.startswith('v_div_scale') or base.startswith('v_mad_u64'):
                self.dst = R[0] | R[1]; self.src = set().union(*R[2:])
            else:
                self.dst = R[0]; self.src = set().union(*R[1:]) if len(R) > 1 else set()
                if base.startswith('v_fmac') or base.startswith('v_pk_fmac') or base.startswith('v_dot2c') or base == 'v_writelane_b32': self.src |= R[0]
                if base.startswith('v_cmpx'): self.dst |= {('s','exec')}
            return
        if mn.startswith('ds_'):
            self.kind = 'ds'
            if mn.startswith('ds_read') or 'rtn' in mn or 'permute' in mn or 'swizzle' in mn:
                self.dst = R[0]; self.src = set().union(*R[1:]) if len(R) > 1 else set()
            else: self.src = set().union(*R) if R else set()
            if 'addtid' in mn: self.src |= {('s','m0')}
            return
        if mn.startswith('buffer_') or mn.startswith('global_'):
            self.kind = 'vmem'
            islds = bool(re.search(r'\blds\b', mods)) or '_lds_' in mn
            if 'load' in mn and not islds:
                self.dst = R[0]; self.src = set().union(*R[1:])
            else:
                self.src = set().union(*R) if R else set()
            if islds: self.src |= {('s','m0')}
            self.wide = set()
            if 'store' in mn and ('x3' in mn or 'x4' in mn):
                self.wide = R[0] if mn.startswith('buffer_') else R[1]
            return
        if mn.startswith('s_'):
            self.kind = 'salu'
            if mn.startswith(('s_cmp','s_cbranch','s_branch','s_waitcnt','s_barrier','s_endpgm','s_setprio','s_sleep','s_bitcmp')):
                self.src = set().union(*R) if R else set()
            else:
                self.dst = R[0] if R else set(); self.src = set().union(*R[1:]) if len(R) > 1 else set()
                if 'saveexec' in mn: self.dst = self.dst | {('s','exec')}
            return
        raise ValueError('unknown instr ' + line)
def isv(x): return {r for r in x if r[0] in 'va'}
def iss(x): return {r for r in x if r[0] == 's'}
def need(p, c):
    n = 0
    if p.kind == 'valu':
        pv, ps = isv(p.dst), iss(p.dst)
        if c.kind == 'mfma' and pv & (c.src | c.srcC): n = max(n, 2)
        if c.kind == 'valu':
            if c.base.startswith('v_permlane') and pv & c.src: n = max(n, 2)
            if c.dpp and pv & c.src: n = max(n, 2)
            if c.base in ('v_readfirstlane_b32', 'v_readlane_b32') and pv & c.src: n = max(n, 1)
            if p.base in TRANS and c.base not in TRANS and pv & c.src: n = max(n, 1)
            if ps & c.src: n = max(n, 4 if c.base in ('v_readlane_b32','v_writelane_b32') else 2)
            if ('s','exec') in ps: n = max(n, 5)
            if ('op_sel' in p.mods and not p.base.startswith('v_pk_')) or 'sdwa' in p.mn or 'dst_sel' in p.mods:
                if pv & (c.src | c.dst): n = max(n, 1)
        if c.kind == 'mfma' and ('s','exec') in ps: n = max(n, 4)
        if c.kind == 'vmem' and ps & c.src: n = max(n, 5)
        if c.kind in ('vmem', 'ds') and p.base in TRANS and pv & c.src: n = max(n, 1)
    if p.kind == 'mfma':
        big = {8: 12, 4: 8}[p.passes]; ov = {8: 10, 4: 6}[p.passes]; war = {8: 7, 4: 3}[p.passes]
        if c.kind == 'mfma':
            if p.dst & c.src: n = max(n, big)
            if p.dst & c.srcC and not (p.dst == c.srcC and p.passes == c.passes): n = max(n, ov)
            if p.dst & c.dst and p.dst != c.srcC: n = max(n, ov)
        elif c.kind in ('valu', 'vmem', 'ds'):
            if p.dst & (c.src | c.dst): n = max(n, big)
            if c.kind == 'valu' and p.srcC & c.dst: n = max(n, war)
    if p.kind == 'salu' and ('s','m0') in p.dst and c.kind in ('vmem', 'ds') and ('s','m0') in c.src: n = max(n, 1)
    if p.kind == 'vmem' and getattr(p, 'wide', None) and c.kind in ('valu','mfma','ds','vmem') and p.wide & c.dst: n = max(n, 2)
    return n
def shortfall(hist, c):
    d = 0; worst = 0; who = None
    for p in reversed(hist):
        if d >= 20: break
        k = need(p, c) - d
        if k > worst: worst, who = k, p
        d += p.states
    return worst, who
def fix(text, verbose=False):
    ins = [I(l) for l in text.split('\n')]
    out = []; hist = []; nins = 0
    for c in ins:
        if c.isinst:
            k, who = shortfall(hist, c)
            if k > 0:
                nop = I(f'    s_nop {k-1}'); out.append(nop); hist.append(nop); nins += 1
                if verbose: print(f'hazard: {k} before "{c.line.strip()}" after "{who.line.strip()}"')
            hist.append(c)
            if c.mn in ('s_branch', 's_endpgm'): hist = []
        out.append(c)
    labels = {c.label: i for i, c in enumerate(out) if c.label}
    for i, c in enumerate(out):
        if c.isinst and c.mn.startswith(('s_cbranch', 's_branch')):
            h = []
            for x in reversed(out[:i+1]):
                if not x.isinst: continue
                if x is not c and x.mn in ('s_branch', 's_endpgm'): break
                h.insert(0, x)
                if len(h) > 24: break
            cnt = 0
            for x in out[labels[c.ops[0]]:]:
                if not x.isinst: continue
                k, who = shortfall(h, x)
                if k > 0: raise RuntimeError(f'branch-edge hazard {k}: "{who.line.strip()}" -> "{x.line.strip()}" via {c.line.strip()}')
                h.append(x); cnt += 1
                if cnt > 20 or x.mn in ('s_branch', 's_endpgm'): break
    return '\n'.join(c.line for c in out)
```

```python
import sys, struct
from asmgen import *
import hazard

NAME = 'concat_heads__linear_attn_block__ssm_conv_s4__prompt_kernel'
def f2u(x): return struct.unpack('<I', struct.pack('<f', x))[0]
LOG2E = 1.4426950408889634
EPS = 1e-6

WS_KVFLAG, WS_OFLAG, WS_UFLAG, WS_YFLAG = 0, 4096, 8192, 12288
WS_ZP  = 65536
WS_KVP = 1 << 20
WS_O   = 4 << 20
WS_UT  = 8 << 20
WS_YT  = 12 << 20
WS_SIZE = 16 << 20
WS_STAMP = 16 << 20
SLOT = 40960
L_TAB = 40960; TABSZ = 8704
L_GS = 133120
L_U = 145408; USZ = 4608
L_FLG = L_U
L_FLW = L_U + USZ
def wo_blk(b):
    if b < 7: return 75776 + 8192*b
    if b < 12: return 8192*(b-7)
    return L_TAB + TABSZ*(b-12)
SPIN = 400000

SX, SW, SWO, SU, SWS, SOUT = 36, 40, 44, 48, 52, 56
sXCD, sI, sCB, sRB, sG, sJ, sWV, sROT = 60, 61, 62, 63, 64, 65, 66, 67
def srd(n): return f's[{n}:{n+3}]'
def vr(a, n): return f'v[{a}:{a+n-1}]'

class K(Asm):
    def __init__(self, stamps=False, stop=None):
        super().__init__()
        self.stamps = stamps; self.nst = 0; self.stop = stop
    def stamp(self, idx):
        if not self.stamps: return
        self(f's_memrealtime s[98:99]\ns_waitcnt lgkmcnt(0)\ns_mov_b32 s{82+idx}, s98')
    def dump_stamps(self, role):
        if not self.stamps: return
        a = self
        a(f's_lshl_b32 s68, s2, 3\ns_add_u32 s68, s68, s{sWV}\ns_add_u32 s68, s68, {4*role}\ns_lshl_b32 s68, s68, 6\ns_add_u32 s68, s68, {WS_STAMP}')
        a('v_mov_b32 v0, s68')
        for i in range(16): a(f'v_mov_b32 v{4+i}, s{82+i}')
        a('s_mov_b64 exec, 1')
        for i in range(4): a(f'global_store_dwordx4 v0, {vr(4+4*i,4)}, s[32:33] offset:{16*i}')
        a('s_mov_b64 exec, -1')
    def poll_global(self, vt, voff, soff, srd_=SWS, first_issued=False):
        a = self; L = a.newlabel('poll'); D = a.newlabel('polld')
        a(f's_mov_b32 s69, {SPIN}')
        if first_issued:
            a(f'v_cmp_ne_u32 vcc, 0, v{vt}\ns_cmp_eq_u64 vcc, -1\ns_cbranch_scc1 {D}')
        a.label(L)
        if srd_ == 'dbg': a(f'global_load_dword v{vt}, v{voff}, s[30:31] sc1')
        else: a(f'buffer_load_dword v{vt}, v{voff}, {srd(srd_)}, {soff} offen sc1')
        a(f's_waitcnt vmcnt(0)\nv_cmp_ne_u32 vcc, 0, v{vt}\ns_cmp_eq_u64 vcc, -1\ns_cbranch_scc1 {D}')
        a(f's_sub_u32 s69, s69, 1\ns_cmp_lg_u32 s69, 0\ns_cbranch_scc1 {L}')
        a.label(D)
    def poll_lds(self, vt, vaddr):
        a = self; L = a.newlabel('lpoll'); D = a.newlabel('lpolld')
        a(f's_mov_b32 s69, {SPIN*8}')
        a.label(L)
        a(f'ds_read_b32 v{vt}, v{vaddr}\ns_waitcnt lgkmcnt(0)\nv_cmp_ne_u32 vcc, 0, v{vt}\ns_cmp_eq_u64 vcc, -1\ns_cbranch_scc1 {D}')
        a(f's_sub_u32 s69, s69, 1\ns_cmp_lg_u32 s69, 0\ns_cbranch_scc1 {L}')
        a.label(D)

def prologue(a, code_bytes):
    a.stamp(0)
    a('s_cmp_ge_u32 s2, 256\ns_cbranch_scc1 L_end')
    a('s_load_dwordx16 s[4:19], s[0:1], 0\ns_load_dwordx8 s[20:27], s[0:1], 64\ns_load_dwordx4 s[28:31], s[0:1], 96\ns_load_dwordx2 s[32:33], s[0:1], 112')
    a(f's_and_b32 s{sXCD}, s2, 7\ns_lshr_b32 s{sI}, s2, 3')
    a('v_lshrrev_b32 v1, 6, v0\nv_and_b32 v0, 63, v0\ns_getpc_b64 s[34:35]')
    a(f'v_readfirstlane_b32 s{sWV}, v1\ns_nop 3')
    nl = (code_bytes + 4095) // 4096
    a(f's_cmp_lg_u32 s{sWV}, 0\ns_cbranch_scc1 L_nopf')
    a(f'v_min_u32 v2, {nl-1}, v0\nv_lshlrev_b32 v2, 5, v2\nv_add_u32 v2, s{sI}, v2\nv_lshlrev_b32 v2, 7, v2\nv_min_u32 v2, {code_bytes-256}, v2')
    a('global_load_dword v250, v2, s[34:35]')
    a.label('L_nopf')
    a(f's_and_b32 s68, s{sXCD}, 3\ns_lshl_b32 s68, s68, 2\ns_and_b32 s69, s{sI}, 3\ns_add_u32 s{sCB}, s68, s69')
    a(f's_lshr_b32 s68, s{sXCD}, 2\ns_lshl_b32 s68, s68, 3\ns_lshr_b32 s70, s{sI}, 2\ns_add_u32 s{sRB}, s68, s70')
    a(f's_add_u32 s{sROT}, s69, s70')
    a(f's_lshl_b32 s68, s{sXCD}, 1\ns_lshr_b32 s69, s{sI}, 4\ns_add_u32 s{sG}, s68, s69\ns_and_b32 s{sJ}, s{sI}, 15')
    for n, sz in ((SX, 4<<20), (SW, 6<<20), (SWO, 2<<20), (SU, 4<<20), (SWS, WS_SIZE), (SOUT, 8<<20)):
        a(f's_mov_b32 s{n+2}, {sz}\ns_mov_b32 s{n+3}, 0x20000')
    a('s_waitcnt lgkmcnt(0)')
    for n, p in ((SX, 4), (SW, 6), (SWO, 8), (SU, 10), (SWS, 32), (SOUT, 28)):
        a(f's_mov_b32 s{n}, s{p}\ns_mov_b32 s{n+1}, s{p+1}')
    a(f's_cmp_ge_u32 s{sWV}, 4\ns_cbranch_scc1 L_S')

AQ, AK, AV = 16, 48, 80
FS = (112, 132)
def g_path(a):
    sRH, sHH, sHEAD, sSLOT, sCNT = 73, 74, 75, 76, 77
    a('s_setprio 2')
    a(f's_and_b32 s{sRH}, s{sWV}, 1\ns_lshr_b32 s{sHH}, s{sWV}, 1\ns_lshl_b32 s{sHEAD}, s{sCB}, 1\ns_add_u32 s{sHEAD}, s{sHEAD}, s{sHH}')
    a('v_lshlrev_b32 v15, 4, v0')
    a('v_mov_b32 v8, 0\nv_mov_b32 v9, 0\nv_mov_b32 v10, 0\nv_mov_b32 v11, 0')
    a('s_cmp_lg_u32 s2, 0\ns_cbranch_scc1 L_nozero')
    a(f's_lshl_b32 s68, s{sWV}, 12')
    for i in range(4): a(f'buffer_store_dwordx4 v[8:11], v15, {srd(SWS)}, s68 offen offset:{1024*i} sc1')
    a(f's_lshl_b32 s68, s{sWV}, 2\nv_mov_b32 v2, s68\nv_mov_b32 v3, 1\ns_waitcnt vmcnt(0)\ns_mov_b64 exec, 1')
    a('global_store_dword v2, v3, s[30:31] sc1\ns_mov_b64 exec, -1')
    a.label('L_nozero')
    a(f's_mul_i32 s68, s{sWV}, {USZ}\ns_add_u32 s68, s68, {L_U}\nv_lshlrev_b32 v2, 3, v0\nv_add_u32 v2, s68, v2\nds_write_b64 v2, v[8:9]')
    a('v_and_b32 v2, 31, v0\nv_lshrrev_b32 v3, 5, v0\nv_bfe_u32 v4, v0, 1, 3\nv_xor_b32 v4, v4, v3\nv_lshlrev_b32 v4, 4, v4\nv_lshl_add_u32 v4, v2, 7, v4')
    a(f's_lshl_b32 s68, s{sRH}, 13\nv_add_u32 v12, s68, v4')
    a('v_bfe_u32 v4, v0, 2, 2\nv_lshl_add_u32 v5, v3, 3, v4\nv_lshlrev_b32 v5, 7, v5')
    a('v_bfe_u32 v6, v0, 4, 1\nv_and_b32 v7, 3, v0\nv_lshlrev_b32 v7, 3, v7\nv_lshl_add_u32 v6, v6, 5, v7')
    a(f's_lshl_b32 s68, s{sHH}, 6\nv_add_u32 v6, s68, v6\nv_bfe_u32 v7, v0, 3, 1\nv_lshlrev_b32 v7, 6, v7\nv_xor_b32 v6, v6, v7')
    a('v_add_u32 v5, v5, v6\nv_add_u32 v13, 16384, v5')
    VX = (2, 3, 4, 5); VW = 6
    def setaddr(first=False):
        o = []
        o.append(f'v_add_u32 v{VX[0]}, s{sSLOT}, v12')
        o.append(f'v_add_u32 v{VW}, s{sSLOT}, v13')
        for k in (1, 2, 3): o.append(f'v_xor_b32 v{VX[k]}, {k<<5}, v{VX[0]}')
        return o
    a(f's_mov_b32 s{sSLOT}, 0\ns_mov_b32 s{sCNT}, 0')
    for l in setaddr(): a(l)
    a(f's_mov_b32 s72, {f2u(EPS)}\ns_mov_b32 s70, {f2u(LOG2E)}\ns_mov_b32 s71, {f2u(LOG2E)}')
    for r in range(AQ, AV): a(f'v_mov_b32 v{r}, s72')
    for r in range(AV, AV+32): a(f'v_mov_b32 v{r}, 0')
    def reads(ks):
        f = FS[ks & 1]
        w = lambda seg, r2: f'ds_read_b64_tr_b16 {vr(f+8+4*seg+2*r2, 2)}, v{VW} offset:{seg*8192+ks*2048+r2*512}'
        x = lambda mt: f'ds_read_b128 {vr(f+4*mt, 4)}, v{VX[ks]} offset:{4096*mt}'
        return [x(0), w(1,0), w(1,1), x(1), w(2,0), w(2,1), w(0,0), w(0,1)]
    def mfmas(ks):
        f = FS[ks & 1]
        X = lambda mt: vr(f+4*mt, 4); W = lambda seg: vr(f+8+4*seg, 4)
        mm = lambda d, x, y: f'v_mfma_f32_32x32x16_bf16 {vr(d,16)}, {x}, {y}, {vr(d,16)}'
        return [mm(AK, X(0), W(1)), mm(AK+16, X(1), W(1)), mm(AV, X(0), W(2)), mm(AV+16, X(1), W(2)), mm(AQ, W(0), X(0)), mm(AQ+16, W(0), X(1))]
    def group(ks, rd, extra=()):
        m = mfmas(ks); rd = list(rd); extra = list(extra)
        plan = [3, 3, 2, 0, 0, 0]
        for i in range(6):
            a(m[i])
            for _ in range(plan[i]):
                if rd: a(rd.pop(0))
            if i >= 3:
                for _ in range(4):
                    if extra: a(extra.pop(0))
    a('s_waitcnt lgkmcnt(0)\ns_barrier')
    a.stamp(1)
    for l in reads(0): a(l)
    a('.p2align 3')
    a.label('L_p1')
    a('s_waitcnt lgkmcnt(0)\ns_nop 0'); group(0, reads(1))
    a('s_waitcnt lgkmcnt(0)\ns_nop 0'); group(1, reads(2))
    a('s_waitcnt lgkmcnt(0)\ns_nop 0')
    ex = [f's_add_u32 s{sSLOT}, s{sSLOT}, {SLOT}', f's_cmp_eq_u32 s{sSLOT}, {3*SLOT}', f's_cselect_b32 s{sSLOT}, 0, s{sSLOT}', f's_add_u32 s{sCNT}, s{sCNT}, 1'] + setaddr() + [f's_cmp_eq_u32 s{sCNT}, 16']
    group(2, reads(3), ex)
    a('s_waitcnt lgkmcnt(0)\ns_cbranch_scc1 L_p1_tail\ns_barrier')
    group(3, reads(0))
    a('s_branch L_p1')
    a.label('L_p1_tail')
    group(3, [])
    a.stamp(2)
    T, ONES, KV, Z, CE = 152, 156, 160, 176, 192
    a(f'v_and_b32 v2, 3, v0\nv_lshlrev_b32 v2, 2, v2\nglobal_load_dword v14, v2, s[30:31] sc1')
    a(f'v_mov_b32 v{CE}, {f2u(-EPS*LOG2E)}\nv_mov_b32 v{CE+1}, {f2u(-EPS*LOG2E)}')
    for i in range(4): a(f'v_mov_b32 v{ONES+i}, 0x3f803f80')
    def phi(acc, dst):
        for u in range(8):
            x = acc + 2*u; t = T + 2*(u & 1)
            a(f'v_pk_fma_f32 {vr(t,2)}, {vr(x,2)}, s[70:71], {vr(CE,2)}')
            a(f'v_exp_f32 v{t}, v{t} clamp\nv_exp_f32 v{t+1}, v{t+1} clamp')
            a(f'v_max_f32 v{x}, s72, v{x}\nv_max_f32 v{x+1}, s72, v{x+1}')
            a(f'v_pk_add_f32 {vr(t,2)}, {vr(t,2)}, {vr(x,2)}')
            a(f'v_cvt_pk_bf16_f32 v{dst+u}, v{t}, v{t+1}')
    def pack(acc, dst, n=8):
        for u in range(n): a(f'v_cvt_pk_bf16_f32 v{dst+u}, v{acc+2*u}, v{acc+2*u+1}')
    for mt in range(2):
        pk, pv = FS[mt], FS[mt] + 8
        phi(AK + 16*mt, pk); pack(AV + 16*mt, pv)
        for h in range(2):
            c = '0' if (mt == 0 and h == 0) else None
            a(f'v_mfma_f32_32x32x16_bf16 {vr(KV,16)}, {vr(pk+4*h,4)}, {vr(pv+4*h,4)}, {c or vr(KV,16)}')
        for h in range(2):
            c = '0' if (mt == 0 and h == 0) else None
            a(f'v_mfma_f32_32x32x16_bf16 {vr(Z,16)}, {vr(pk+4*h,4)}, {vr(ONES,4)}, {c or vr(Z,16)}')
    a(f's_lshl_b32 s68, s{sWV}, 11\ns_add_u32 s68, s68, {L_GS}\nv_add_u32 v2, s68, v15\nv_xor_b32 v3, 2048, v2' if (L_GS // 2048) % 2 == 0 else
      f's_lshl_b32 s68, s{sWV}, 11\ns_add_u32 s69, s68, {L_GS}\nv_add_u32 v2, s69, v15\ns_xor_b32 s68, s68, 2048\ns_add_u32 s68, s68, {L_GS}\nv_add_u32 v3, s68, v15')
    a(f's_lshl_b32 s68, s{sWV}, 2\ns_add_u32 s69, s68, {L_FLG}\nv_mov_b32 v4, s69\ns_xor_b32 s68, s68, 4\ns_add_u32 s68, s68, {L_FLG}\nv_mov_b32 v5, s68\nv_mov_b32 v6, 1')
    a(f's_cmp_eq_u32 s{sRH}, 0\ns_nop 2\ns_cbranch_scc1 L_noswap')
    for i in range(8): a(f'v_swap_b32 v{KV+i}, v{KV+8+i}')
    a.label('L_noswap')
    a(f'ds_write_b128 v2, {vr(KV+8,4)}\nds_write_b128 v2, {vr(KV+12,4)} offset:1024\nds_write_b32 v4, v6')
    pack(Z, 112)
    a('v_and_b32 v7, 1, v0\nv_cmp_eq_u32 vcc, 1, v7\nv_lshrrev_b32 v8, 5, v0\nv_lshl_add_u32 v7, v8, 1, v7\nv_lshlrev_b32 v7, 4, v7')
    for i in range(4): a(f'v_cndmask_b32 v{112+i}, v{112+i}, v{116+i}, vcc')
    a(f's_lshl_b32 s68, s{sHEAD}, 5\ns_lshl_b32 s69, s{sRB}, 1\ns_add_u32 s69, s69, s{sRH}\ns_add_u32 s78, s68, s69')
    a(f's_lshl_b32 s68, s78, 6\ns_add_u32 s68, s68, {WS_ZP}\ns_mov_b32 exec_lo, 3\ns_mov_b32 exec_hi, 3')
    a(f'buffer_store_dwordx4 v[112:115], v7, {srd(SWS)}, s68 offen sc1\ns_mov_b64 exec, -1')
    a.poll_lds(8, 5)
    a(f'ds_read_b128 {vr(KV+8,4)}, v3\nds_read_b128 {vr(KV+12,4)}, v3 offset:1024')
    a(f's_lshl_b32 s68, s{sHEAD}, 1\ns_add_u32 s68, s68, s{sRH}\ns_lshl_b32 s79, s68, 14\ns_add_u32 s79, s79, {WS_KVP}')
    a(f's_lshl_b32 s68, s{sRB}, 10\ns_add_u32 s68, s68, s79\ns_waitcnt lgkmcnt(0)')
    for i in range(4): a(f'v_pk_add_f32 {vr(KV+2*i,2)}, {vr(KV+2*i,2)}, {vr(KV+8+2*i,2)}')
    pack(KV, 116, 4)
    a(f'buffer_store_dwordx4 v[116:119], v15, {srd(SWS)}, s68 offen sc1')
    a.stamp(3)
    PQ = 48
    phi(AQ, PQ); phi(AQ + 16, PQ + 8)
    SEL = 64
    a('v_and_b32 v7, 31, v0\nv_lshrrev_b32 v8, 5, v0\nv_lshlrev_b32 v8, 2, v8\nv_sub_u32 v7, v7, v8')
    a('v_mov_b32 v9, 0x3f80\nv_mov_b32 v10, 0x3f800000')
    for u in range(4):
        m0 = 8*(u >> 1) + 2*(u & 1)
        a(f'v_cmp_eq_u32 vcc, {m0}, v7\nv_cmp_eq_u32 s[80:81], {m0+1}, v7\nv_cndmask_b32 v{SEL+u}, 0, v9, vcc\nv_cndmask_b32 v{SEL+u}, v{SEL+u}, v10, s[80:81]')
    a('s_waitcnt vmcnt(0)')
    a('v_and_b32 v2, 3, v0\nv_lshlrev_b32 v2, 2, v2')
    a.poll_global(14, 2, None, 'dbg', first_issued=True)
    a(f's_lshl_b32 s68, s78, 2\ns_add_u32 s68, s68, {WS_KVFLAG}\nv_mov_b32 v2, 0\ns_mov_b64 exec, 1')
    a(f'buffer_store_dword v6, v2, {srd(SWS)}, s68 offen sc1\ns_mov_b64 exec, -1')
    a.stamp(4)
    a(f'v_and_b32 v11, 31, v0\nv_lshlrev_b32 v11, 2, v11\ns_lshl_b32 s68, s{sHEAD}, 7\ns_add_u32 s68, s68, {WS_KVFLAG}')
    a.poll_global(14, 11, 's68')
    a.stamp(5)
    ZA, PB, SUM = 68, 80, 160
    a(f'v_and_b32 v2, 31, v0\nv_lshlrev_b32 v2, 6, v2\nv_lshrrev_b32 v3, 5, v0\nv_lshl_add_u32 v2, v3, 5, v2\ns_lshl_b32 s68, s{sHEAD}, 11\ns_add_u32 s68, s68, {WS_ZP}')
    a(f'buffer_load_dwordx4 {vr(ZA,4)}, v2, {srd(SWS)}, s68 offen sc1\nbuffer_load_dwordx4 {vr(ZA+4,4)}, v2, {srd(SWS)}, s68 offen offset:16 sc1')
    a(f's_lshl_b32 s69, s{sRB}, 11')
    for p in range(8):
        a(f's_and_b32 s69, s69, 0x3fff\ns_add_u32 s68, s69, s79')
        a(f'buffer_load_dwordx4 {vr(PB+8*p,4)}, v15, {srd(SWS)}, s68 offen sc1\nbuffer_load_dwordx4 {vr(PB+8*p+4,4)}, v15, {srd(SWS)}, s68 offen offset:1024 sc1')
        a('s_add_u32 s69, s69, 2048')
    DEN = (176, 192); NUM = (16, 32)
    a('s_waitcnt vmcnt(16)')
    for mt in range(2):
        a(f'v_mfma_f32_32x32x16_bf16 {vr(DEN[mt],16)}, {vr(ZA,4)}, {vr(PQ+8*mt,4)}, 0')
        a(f'v_mfma_f32_32x32x16_bf16 {vr(DEN[mt],16)}, {vr(ZA+4,4)}, {vr(PQ+8*mt+4,4)}, {vr(DEN[mt],16)}')
    for p in range(16):
        a(f's_waitcnt vmcnt({15-p})')
        a(f'v_mfma_f32_32x32x16_bf16 {vr(SUM,16)}, {vr(SEL,4)}, {vr(PB+4*p,4)}, {"0" if p == 0 else vr(SUM,16)}')
    for mt in range(2):
        d = DEN[mt]
        for i in range(4): a(f'v_pk_add_f32 {vr(d+2*i,2)}, {vr(d+2*i,2)}, {vr(d+8+2*i,2)}')
        for i in range(2): a(f'v_pk_add_f32 {vr(d+2*i,2)}, {vr(d+2*i,2)}, {vr(d+4+2*i,2)}')
        a(f'v_pk_add_f32 {vr(d,2)}, {vr(d,2)}, {vr(d+2,2)}\nv_add_f32 v{d}, v{d}, v{d+1}')
    pack(SUM, 112, 4)
    a(f's_lshl_b32 s68, s{sWV}, 10\ns_add_u32 s68, s68, {L_GS+8192}\nv_add_u32 v2, s68, v15\nds_write_b128 v2, v[112:115]\nds_write_b32 v4, v6 offset:16')
    a(f's_lshl_b32 s68, s{sHH}, 11\ns_add_u32 s68, s68, {L_GS+8192}\nv_add_u32 v3, s68, v15\nv_add_u32 v5, 16, v5')
    a(f'v_permlane32_swap_b32 v{DEN[0]}, v{DEN[1]}\nv_add_f32 v7, v{DEN[0]}, v{DEN[1]}\nv_add_f32 v7, s72, v7\nv_rcp_f32 v7, v7')
    a('v_mov_b32 v8, v7\nv_mov_b32 v10, v7\nv_permlane32_swap_b32 v8, v10')
    a.poll_lds(9, 5)
    a('ds_read_b128 v[116:119], v3\nds_read_b128 v[120:123], v3 offset:1024\ns_waitcnt lgkmcnt(0)')
    for mt in range(2):
        a(f'v_mfma_f32_32x32x16_bf16 {vr(NUM[mt],16)}, v[116:119], {vr(PQ+8*mt,4)}, 0')
        a(f'v_mfma_f32_32x32x16_bf16 {vr(NUM[mt],16)}, v[120:123], {vr(PQ+8*mt+4,4)}, {vr(NUM[mt],16)}')
    a(f's_lshl_b32 s68, s{sRB}, 1\ns_add_u32 s68, s68, s{sRH}\ns_lshl_b32 s80, s68, 17\ns_lshl_b32 s69, s{sHEAD}, 11\ns_add_u32 s80, s80, s69\ns_add_u32 s80, s80, {WS_O}')
    a(f's_lshl_b32 s81, s68, 7\ns_lshl_b32 s69, s{sHEAD}, 2\ns_add_u32 s81, s81, s69\ns_add_u32 s81, s81, {WS_OFLAG}')
    for mt in range(2):
        n = NUM[mt]; r = (8, 10)[mt]; o = 124 + 8*mt
        for u in range(8):
            a(f'v_pk_mul_f32 {vr(n+2*u,2)}, {vr(n+2*u,2)}, {vr(r,2)} op_sel_hi:[1,0]')
            a(f'v_cvt_pk_bf16_f32 v{o+u}, v{n+2*u}, v{n+2*u+1}')
            if u & 3 == 3: a(f'buffer_store_dwordx4 {vr(o+u-3,4)}, v15, {srd(SWS)}, s80 offen offset:{1024*(u>>2)} sc1')
        if mt == 0: a('s_add_u32 s80, s80, 65536')
    a.stamp(6)
    VB = (2, 3, 12)
    a('v_lshrrev_b32 v3, 5, v0\nv_bfe_u32 v7, v0, 2, 2\nv_lshl_add_u32 v7, v3, 2, v7\nv_lshlrev_b32 v7, 7, v7')
    a('v_bfe_u32 v8, v0, 4, 1\nv_and_b32 v9, 1, v0\nv_lshl_add_u32 v8, v8, 1, v9\nv_bfe_u32 v9, v0, 1, 1\nv_lshl_add_u32 v8, v8, 1, v9\nv_lshlrev_b32 v8, 3, v8')
    a('v_bfe_u32 v9, v0, 3, 1\nv_lshl_add_u32 v8, v9, 6, v8\nv_add_u32 v2, v7, v8')
    a('v_add_u32 v3, 0x10000, v2\nv_add_u32 v12, 0x20000, v2\nv_xor_b32 v7, 64, v2\nv_xor_b32 v8, 64, v3\nv_xor_b32 v13, 64, v12')
    VB = ((2, 7), (3, 8), (12, 13))
    a(f'v_and_b32 v9, 3, v0\nv_lshlrev_b32 v9, 2, v9\nv_add_u32 v9, {L_FLW}, v9')
    a('s_waitcnt vmcnt(0)\nv_mov_b32 v10, 0\ns_mov_b64 exec, 1')
    a(f'buffer_store_dword v6, v10, {srd(SWS)}, s81 offen sc1\ns_mov_b64 exec, -1')
    a.stamp(7)
    a.poll_lds(14, 9)
    a(f's_lshl_b32 s68, s{sG}, 1\ns_add_u32 s68, s68, s{sHH}\ns_lshl_b32 s68, s68, 7\ns_add_u32 s68, s68, {WS_OFLAG}')
    a.poll_global(14, 11, 's68')
    a.stamp(8)
    ACC, AR, BF = (16, 32), 48, (80, 88)
    a(f's_lshl_b32 s78, s{sG}, 2\ns_add_u32 s78, s78, s{sWV}\ns_lshl_b32 s79, s78, 16\ns_add_u32 s79, s79, {WS_O}\ns_lshl_b32 s80, s{sJ}, 12')
    def aload(i):
        o = []
        if i % 4 == 0: o.append(f's_add_u32 s81, s80, s79\ns_add_u32 s80, s80, 4096\ns_and_b32 s80, s80, 0xffff')
        o.append(f'buffer_load_dwordx4 {vr(AR+4*(i%8),4)}, v15, {srd(SWS)}, s81 offen offset:{1024*(i%4)} sc1')
        return o
    def bread(i):
        o = []
        for t in range(2):
            for r2 in range(2):
                off = wo_blk(i >> 2) + (i & 3)*2048 + r2*1024
                o.append(f'ds_read_b64_tr_b16 {vr(BF[i&1]+4*t+2*r2,2)}, v{VB[off>>16][t]} offset:{off & 0xffff}')
        return o
    for i in range(7):
        for l in aload(i): a(l)
    for l in bread(0): a(l)
    for i in range(64):
        if i == 47:
            a('v_add_u32 v9, 16, v9'); a.poll_lds(14, 9)
        a(f's_waitcnt vmcnt({min(6, 63-i)}) lgkmcnt(0)')
        rd = bread(i+1) if i < 63 else []
        for t in range(2):
            a(f'v_mfma_f32_32x32x16_bf16 {vr(ACC[t],16)}, {vr(BF[i&1]+4*t,4)}, {vr(AR+4*(i%8),4)}, {"0" if i == 0 else vr(ACC[t],16)}')
            if t == 0:
                for l in rd: a(l)
            elif i + 7 < 64:
                for l in aload(i+7): a(l)
    a.stamp(9)
    a(f'v_and_b32 v2, 15, v0\nv_lshlrev_b32 v2, 12, v2\nv_bfe_u32 v3, v0, 4, 1\nv_lshl_add_u32 v2, v3, 5, v2\nv_lshrrev_b32 v3, 5, v0\nv_lshl_add_u32 v2, v3, 4, v2')
    a(f's_lshl_b32 s68, s78, 17\ns_lshl_b32 s69, s{sJ}, 7\ns_add_u32 s68, s68, s69\ns_add_u32 s69, s68, 65536')
    for t in range(2):
        o = 48 + 8*t
        pack(ACC[t], o)
        for i in range(4): a(f'v_permlane16_swap_b32 v{o+i}, v{o+4+i}')
        a(f'buffer_store_dwordx4 {vr(o,4)}, v2, {srd(SOUT)}, s68 offen offset:{64*t}')
        a(f'buffer_store_dwordx4 {vr(o+4,4)}, v2, {srd(SOUT)}, s69 offen offset:{64*t}')
    if a.stamps:
        a('s_waitcnt vmcnt(0)'); a.stamp(10); a.dump_stamps(0)
    a('s_endpgm')

def s_path(a):
    sSLOT, sCNT, sXO, sWOF, sM, sCH, sUB, sTB = 73, 74, 75, 76, 77, 78, 79, 80
    a.label('L_S')
    a(f's_sub_u32 s{sWV}, s{sWV}, 4')
    a('v_lshrrev_b32 v3, 3, v0\nv_and_b32 v4, 7, v0')
    a(f's_lshl_b32 s68, s{sRB}, 7\ns_lshl_b32 s69, s{sWV}, 5\ns_add_u32 s68, s68, s69\nv_add_u32 v5, s68, v3\nv_lshlrev_b32 v5, 11, v5')
    a('v_lshrrev_b32 v6, 4, v0\nv_xor_b32 v6, v6, v4\nv_lshl_add_u32 v10, v6, 4, v5\nv_xor_b32 v11, 64, v10\nv_add_u32 v11, 16384, v11\nv_add_u32 v12, 32768, v10\nv_add_u32 v13, 32768, v11')
    a(f's_lshl_b32 s69, s{sWV}, 4\nv_add_u32 v5, s69, v3\nv_mul_u32_u24 v5, 6144, v5\nv_bfe_u32 v6, v0, 4, 1\nv_lshlrev_b32 v6, 2, v6\nv_xor_b32 v16, v6, v4')
    a(f'v_lshl_add_u32 v5, v16, 4, v5\ns_lshl_b32 s68, s{sCB}, 7\nv_add_u32 v14, s68, v5\nv_add_u32 v15, {8*6144}, v14')
    a(f's_mov_b32 s{sSLOT}, 0\ns_mov_b32 s{sCNT}, 0\ns_lshl_b32 s81, s{sXCD}, 1')
    def issue():
        a(f's_add_u32 s68, s{sCNT}, s{sROT}\ns_and_b32 s68, s68, 3\ns_and_b32 s69, s{sCNT}, 12\ns_add_u32 s68, s68, s69\ns_add_u32 s68, s68, s81\ns_and_b32 s68, s68, 15')
        a(f's_lshl_b32 s{sXO}, s68, 7\ns_mul_i32 s{sWOF}, s68, {64*6144}')
        a(f's_lshl_b32 s{sM}, s{sWV}, 12\ns_add_u32 s{sM}, s{sM}, s{sSLOT}')
        for p in range(4):
            a(f's_add_u32 m0, s{sM}, {1024*p}\nbuffer_load_dwordx4 v{10+p}, {srd(SX)}, s{sXO} offen lds')
        a(f's_lshl_b32 s{sM}, s{sWV}, 11\ns_add_u32 s{sM}, s{sM}, s{sSLOT}')
        for seg in (1, 2, 0):
            a(f's_add_u32 s68, s{sWOF}, {2048*seg}')
            for p in range(2):
                a(f's_add_u32 m0, s{sM}, {16384+8192*seg+1024*p}\nbuffer_load_dwordx4 v{14+p}, {srd(SW)}, s68 offen lds')
        a(f's_add_u32 s{sCNT}, s{sCNT}, 1\ns_add_u32 s{sSLOT}, s{sSLOT}, {SLOT}\ns_cmp_eq_u32 s{sSLOT}, {3*SLOT}\ns_cselect_b32 s{sSLOT}, 0, s{sSLOT}')
    a(f's_mov_b32 s72, 0')
    a.label('L_ld')
    issue()
    a(f's_cmp_eq_u32 s{sCNT}, 1\ns_cbranch_scc1 L_ld')
    a(f's_cmp_eq_u32 s{sCNT}, 16\ns_cbranch_scc1 L_ld_done\ns_waitcnt vmcnt(10)\ns_barrier\ns_branch L_ld')
    a.label('L_ld_done')
    a(f's_mul_i32 s{sUB}, s{sWV}, {USZ}\ns_add_u32 s{sUB}, s{sUB}, {L_U+512}\ns_mul_i32 s{sTB}, s{sWV}, {TABSZ}\ns_add_u32 s{sTB}, s{sTB}, {L_TAB}')
    a(f's_lshl_b32 s68, s{sJ}, 7\ns_lshl_b32 s69, s{sWV}, 5\ns_add_u32 s68, s68, s69\nv_add_u32 v5, s68, v3\nv_lshlrev_b32 v5, 11, v5')
    a('v_bfe_u32 v6, v0, 4, 1\nv_lshlrev_b32 v6, 1, v6\nv_xor_b32 v6, v6, v4\nv_lshl_add_u32 v10, v6, 4, v5\nv_xor_b32 v11, 64, v10')
    a(f's_lshl_b32 s68, s{sG}, 7')
    for p in range(4):
        a(f's_add_u32 m0, s{sUB}, {1024*p}\nbuffer_load_dwordx4 v{10+(p&1)}, {srd(SU)}, s68 offen lds\ns_add_u32 s68, s68, 16384')
    a(f's_lshl_b32 s{sCH}, s{sG}, 6\ns_lshl_b32 s68, s{sJ}, 2\ns_add_u32 s{sCH}, s{sCH}, s68\ns_add_u32 s{sCH}, s{sCH}, s{sWV}')
    PR = 20
    a(f's_lshl_b32 s68, s{sCH}, 8\nv_lshlrev_b32 v5, 2, v0\nv_add_u32 v5, s68, v5\ns_lshl_b32 s68, s{sCH}, 1\nv_mov_b32 v6, s68\nv_and_b32 v7, 3, v0\nv_lshlrev_b32 v7, 2, v7')
    for i in range(6): a(f'global_load_dword v{PR+i}, v5, s[{12+2*i}:{13+2*i}]')
    a(f'global_load_ushort v26, v6, s[24:25]\nglobal_load_ushort v27, v6, s[26:27]\nglobal_load_dword v28, v7, s[30:31] sc1')
    a('s_waitcnt vmcnt(23)\ns_barrier\ns_waitcnt vmcnt(13)\ns_barrier')
    a.stamp(1)
    a('v_lshrrev_b32 v5, 4, v0\nv_bfe_u32 v6, v0, 2, 2\nv_lshl_add_u32 v6, v5, 3, v6\nv_lshlrev_b32 v6, 7, v6\nv_and_b32 v8, 3, v0\nv_lshl_add_u32 v6, v8, 3, v6')
    a(f'v_bfe_u32 v8, v0, 3, 2\nv_lshl_add_u32 v6, v8, 5, v6\nv_add_u32 v6, s{sUB}, v6')
    for cq in range(1, 4): a(f'v_xor_b32 v{9+cq}, {cq<<5}, v6')
    a(f'v_and_b32 v8, 15, v0\nv_lshlrev_b32 v8, 12, v8\nv_lshl_add_u32 v8, v5, 4, v8')
    a(f's_lshl_b32 s68, s{sG}, 18\ns_lshl_b32 s69, s{sJ}, 8\ns_add_u32 s68, s68, s69\ns_lshl_b32 s69, s{sWV}, 6\ns_add_u32 s68, s68, s69\ns_add_u32 s68, s68, {WS_UT}')
    a('s_waitcnt vmcnt(9)')
    for cq in range(4):
        for r2 in range(2): a(f'ds_read_b64_tr_b16 {vr(32+4*cq+2*r2,2)}, v{6 if cq == 0 else 9+cq} offset:{512*r2}')
    for cq in range(4):
        a(f's_waitcnt lgkmcnt({6-2*cq})\nbuffer_store_dwordx4 {vr(32+4*cq,4)}, v8, {srd(SWS)}, s68 offen sc1\ns_add_u32 s68, s68, 65536')
    a.stamp(2)
    a(f'v_lshlrev_b32 v17, 11, v3\nv_lshl_add_u32 v17, v16, 4, v17\ns_lshl_b32 s68, s{sJ}, 7\nv_add_u32 v17, s68, v17')
    def wo_piece(b, sp, lds_s, lds_c):
        a(f's_add_u32 m0, {lds_s}, {lds_c}\nbuffer_load_dwordx4 v17, {srd(SWO)}, {sp} offen lds')
    def wo_block_shared(b):
        a(f's_add_u32 s68, s{sJ}, {b}\ns_and_b32 s68, s68, 15\ns_lshl_b32 s68, s68, 17\ns_add_u32 s68, s68, s71')
        wo_piece(b, 's68', 's70', wo_blk(b)); a('s_add_u32 s68, s68, 16384'); wo_piece(b, 's68', 's70', wo_blk(b) + 1024)
    a(f's_lshl_b32 s70, s{sWV}, 11\ns_lshl_b32 s71, s{sWV}, 15')
    DT, KA, YF, XF = 29, 48, 64, 96
    AR_, AI, BR, BI, CR, CI = 32, 33, 34, 35, 36, 37
    E1, E8, E256, TT = 38, 40, 42, 44
    XS = 128
    a('s_waitcnt vmcnt(4)')
    hi = struct.unpack('<f', struct.pack('<I', f2u(LOG2E) & 0xffffff00))[0]
    a(f'v_lshlrev_b32 v26, 16, v26\nv_mul_f32 v30, {f2u(hi)}, v26\nv_rndne_f32 v31, v30\nv_sub_f32 v30, v30, v31\ns_mov_b32 s68, {f2u(LOG2E-hi)}\nv_fma_f32 v30, v26, s68, v30')
    a(f'v_exp_f32 v30, v30\nv_cvt_i32_f32 v31, v31\nv_ldexp_f32 v30, v30, v31\nv_cvt_pk_bf16_f32 v30, v30, v30\nv_lshlrev_b32 v{DT}, 16, v30')
    a(f'v_lshlrev_b32 v27, 16, v27\nv_cmp_eq_u32 vcc, 0, v0')
    for i in range(1, 16): a(f'v_mov_b32 v{KA+i}, 0')
    a(f'v_cndmask_b32 v{KA}, 0, v27, vcc')
    a('v_and_b32 v5, 31, v0\nv_lshrrev_b32 v6, 5, v0\nv_lshlrev_b32 v6, 4, v6')
    a(f'v_add_u32 v6, s{sTB}, v6\nv_mul_u32_u24 v8, 272, v5\nv_add_u32 v18, v8, v6')
    def mrow(half, rho): return 8*(rho >> 2) + 4*half + (rho & 3)
    base_of = {}
    seg1 = [0,0,2,4,4,4,6,8,8]
    for half in range(2):
        for rho in range(9): base_of[mrow(half, rho)] = rho if half == 0 else 256 + seg1[rho]
        for k in range(3): base_of[mrow(half, 9+k)] = 512 + 256*half + 4*k
        for k in range(2):
            base_of[mrow(half, 12+k)] = 1024 + 256*half + 8*k
            base_of[mrow(half, 14+k)] = 1536 + 256*half + 8*k
    pos = {}
    for m in range(32): pos.setdefault(base_of[m], m)
    a('v_mov_b32 v19, v18')
    for m in range(32):
        if pos[base_of[m]] != m:
            a(f'v_cmp_eq_u32 vcc, {m}, v5\nv_add_u32 v8, {272*pos[base_of[m]]}, v6\nv_cndmask_b32 v19, v19, v8, vcc')
    def cmul(d, x, e):
        a(f'v_pk_mul_f32 {vr(TT,2)}, {vr(x,2)}, {vr(e,2)} op_sel_hi:[0,1]')
        a(f'v_pk_fma_f32 {vr(d,2)}, {vr(x,2)}, {vr(e,2)}, {vr(TT,2)} op_sel:[1,1,0] op_sel_hi:[1,0,1] neg_lo:[0,1,0]')
    cnt = [0]
    TOFF = 16384
    def put(x, row, neg):
        t = 46 + (cnt[0] & 1); cnt[0] += 1
        a(f'v_cvt_pk_bf16_f32 v{t}, v{x}, {"-" if neg else ""}v{x+1}\nds_write_addtid_b32 v{t} offset:{TOFF + 272*row}')
    a(f's_mov_b32 s72, 0')
    a('.p2align 3')
    a.label('L_kgen')
    for i in range(6): a(f'v_lshlrev_b32 v{32+i}, 16, v{PR+i}\nv_lshrrev_b32 v{PR+i}, 16, v{PR+i}')
    a(f's_sub_u32 m0, s{sTB}, {TOFF}')
    for r in (AR_, AI, BR, BI): a(f'v_mul_f32 v{r}, v{DT}, v{r}')
    a(f'v_mul_f32 v{AR_}, {f2u(LOG2E)}, v{AR_}\nv_mul_f32 v{AI}, 0.15915494, v{AI}')
    cmul(XS, BR, CR)
    for L, e in ((8, E8), (1, E1), (256, E256)):
        if L == 1: a(f'v_exp_f32 v30, v{AR_}\nv_fract_f32 v31, v{AI}')
        else: a(f'v_mul_f32 v30, {f2u(float(L))}, v{AR_}\nv_mul_f32 v31, {f2u(float(L))}, v{AI}\nv_exp_f32 v30, v30\nv_fract_f32 v31, v31')
        a(f'v_cos_f32 v{e}, v31\nv_sin_f32 v{e+1}, v31\ns_nop 0\nv_pk_mul_f32 {vr(e,2)}, {vr(e,2)}, v[30:31] op_sel_hi:[1,0]')
    a(f'v_mov_b32 v46, 0x3f80\nds_write_addtid_b32 v46 offset:{TOFF}'); cnt[0] = 1
    put(E8, 1, False)
    YC = 146
    cmul(YC, E8, E8); put(YC, 2, False)
    for n in range(3, 32): cmul(YC, YC, E8); put(YC, n, False)
    for k in range(8): a(f'ds_read_b128 {vr(YF+4*k,4)}, v18 offset:{32*k}')
    put(XS, pos[0], True)
    for k in range(1, 9): cmul(XS+2*k, XS+2*k-2, E1); put(XS+2*k, pos[k], True)
    for blk in range(1, 8):
        ks = (0,2,4,6,8) if blk == 1 else (0,4,8) if blk < 4 else (0,8)
        for k in ks: cmul(XS+2*k, XS+2*k, E256); put(XS+2*k, pos[256*blk+k], True)
    for k in range(8): a(f'ds_read_b128 {vr(XF+4*k,4)}, v19 offset:{32*k}')
    for k in range(8):
        a(f's_waitcnt lgkmcnt({7-k})\nv_mfma_f32_32x32x16_bf16 {vr(KA,16)}, {vr(XF+4*k,4)}, {vr(YF+4*k,4)}, {vr(KA,16)}')
    a('s_cmp_eq_u32 s72, 1\ns_cbranch_scc1 L_kgen_done')
    a('s_waitcnt vmcnt(0)')
    a.poll_global(28, 7, None, 'dbg', first_issued=True)
    a(f's_lshl_b32 s68, s{sG}, 8\ns_lshl_b32 s69, s{sJ}, 4\ns_add_u32 s68, s68, s69\ns_lshl_b32 s69, s{sWV}, 2\ns_add_u32 s81, s68, s69\ns_add_u32 s68, s81, {WS_UFLAG}')
    a(f'v_mov_b32 v8, 0\nv_mov_b32 v9, 1\ns_mov_b64 exec, 1\nbuffer_store_dword v9, v8, {srd(SWS)}, s68 offen sc1\ns_mov_b64 exec, -1')
    a.stamp(3)
    for b in range(0, 3): wo_block_shared(b)
    a('s_mov_b32 s72, 1\ns_branch L_kgen')
    a.label('L_kgen_done')
    a.stamp(4)
    a(f'v_lshlrev_b32 v10, 2, v0\ns_lshl_b32 s68, s{sG}, 8\ns_add_u32 s68, s68, {WS_UFLAG}')
    a.poll_global(28, 10, 's68')
    a.stamp(5)
    a(f'v_lshlrev_b32 v15, 4, v0\ns_lshl_b32 s68, s{sCH}, 12\ns_add_u32 s68, s68, {WS_UT}\ns_mov_b32 m0, s{sUB}')
    for p in range(4): a(f'buffer_load_dwordx4 v15, {srd(SWS)}, s68 offen offset:{1024*p} sc1 lds')
    CB = 4160
    a(f's_add_u32 s68, s{sTB}, {4080-3072}\nv_sub_u32 v5, s68, v15')
    a('v_and_b32 v6, 1, v0\nv_cmp_eq_u32 vcc, 1, v6')
    def chunk(g, copy, pairs, t):
        for i, (lo, hi_) in enumerate(pairs): a(f'v_cvt_pk_bf16_f32 v{t+i}, v{lo}, v{hi_}')
        a(f'ds_write_b128 v5, {vr(t,4)} offset:{CB*copy + 1024*(3-g)}')
    k = lambda r: KA + r
    chunk(0, 0, [(k(7),k(6)), (k(5),k(4)), (k(3),k(2)), (k(1),k(0))], 64)
    chunk(0, 1, [(k(8),k(7)), (k(6),k(5)), (k(4),k(3)), (k(2),k(1))], 68)
    chunk(1, 0, [(k(11),k(11)), (k(10),k(10)), (k(10),k(9)), (k(9),k(9))], 72)
    chunk(1, 1, [(k(11),k(11)), (k(11),k(10)), (k(10),k(10)), (k(9),k(9))], 76)
    for g in (2, 3):
        z0, z8 = k(8+2*g), k(9+2*g); X = 30 + (g & 1)
        a(f'v_cndmask_b32 v{X}, v{z0}, v{z8}, vcc')
        chunk(g, 0, [(z8,z8), (z8,X), (z0,z0), (z0,z0)], 64+8*g)
        chunk(g, 1, [(z8,z8), (z8,z8), (X,z0), (z0,z0)], 68+8*g)
    a(f'v_mov_b32 v8, 0\nv_cvt_pk_bf16_f32 v9, v{KA}, v8\nv_cmp_eq_u32 vcc, 0, v0\nv_and_b32 v6, 7, v0\nv_lshlrev_b32 v6, 2, v6\nv_cndmask_b32 v9, 0, v9, vcc')
    a(f'v_cmp_gt_u32 vcc, 8, v0\nv_mov_b32 v11, {CB}\nv_add_u32 v6, s{sTB}, v6\nv_cndmask_b32 v11, 0, v11, vcc\nv_add_u32 v6, v6, v11\ns_mov_b64 exec, 0xffff\nds_write_b32 v6, v9 offset:4096\ns_mov_b64 exec, -1')
    for b in range(3, 7): wo_block_shared(b)
    a(f'v_and_b32 v6, 3, v0\nv_lshlrev_b32 v6, 2, v6\nv_add_u32 v6, {L_FLG}, v6')
    a.poll_lds(9, 6)
    for b in range(7, 12): wo_block_shared(b)
    CA, AF, BF = 32, 64, 96
    VA = (10, 11, 12, 13); VBu = 14
    a('v_and_b32 v5, 15, v0\nv_lshrrev_b32 v6, 4, v0\nv_and_b32 v8, 1, v0\nv_add_u32 v9, v5, v8\nv_lshlrev_b32 v9, 1, v9\nv_lshlrev_b32 v11, 4, v6\nv_sub_u32 v9, v11, v9')
    a(f'v_xor_b32 v8, 1, v8\nv_mul_u32_u24 v8, {CB}, v8\nv_add_u32 v9, v9, v8\ns_add_u32 s68, s{sTB}, {2*(2048-16)-512}\nv_add_u32 v{VA[0]}, s68, v9')
    for i in range(1, 4): a(f'v_subrev_u32 v{VA[i]}, {1024*i}, v{VA[0]}')
    a(f'v_lshlrev_b32 v5, 5, v5\nv_lshl_add_u32 v5, v6, 4, v5\ns_sub_u32 s68, s{sUB}, 32\nv_add_u32 v{VBu}, s68, v5')
    for i in range(32): a(f'v_mov_b32 v{CA+i}, 0')
    def rdA(D):
        o = 128*(1 - (D & 1))
        return [f'ds_read2_b32 {vr(AF+4*D,2)}, v{VA[D>>1]} offset0:{o} offset1:{o+1}', f'ds_read2_b32 {vr(AF+4*D+2,2)}, v{VA[D>>1]} offset0:{o+2} offset1:{o+3}']
    def rdB(t): return f'ds_read_b128 {vr(BF+4*t,4)}, v{VBu} offset:{512*t}'
    for D in range(7, 0, -1):
        for l in rdA(D): a(l)
    a('s_waitcnt vmcnt(18) lgkmcnt(0)')
    a.stamp(6)
    for t in range(8): a(rdB(t))
    for l in rdA(0): a(l)
    a('s_mov_b32 s72, 0')
    a('.p2align 3')
    a.label('L_conv')
    a(f'v_subrev_u32 v{VA[3]}, 64, v{VA[3]}\nv_subrev_u32 v{VA[2]}, 64, v{VA[2]}\nv_subrev_u32 v{VA[1]}, 64, v{VA[1]}\nv_subrev_u32 v{VA[0]}, 64, v{VA[0]}\nv_subrev_u32 v{VBu}, 64, v{VBu}\ns_add_u32 s72, s72, 1')
    waits = {7: 9, 6: 10, 5: 11, 4: 6}
    for D in range(7, -1, -1):
        if D in waits: a(f's_waitcnt lgkmcnt({waits[D]})\ns_nop 0')
        for t in range(8 - D):
            a(f'v_mfma_f32_16x16x32_bf16 {vr(CA+4*(D+t),4)}, {vr(AF+4*D,4)}, {vr(BF+4*t,4)}, {vr(CA+4*(D+t),4)}')
            if D == 0: a(rdB(t))
        for l in rdA(D): a(l)
    a('s_cmp_eq_u32 s72, 5\ns_cbranch_scc0 L_conv_n')
    a(f's_waitcnt vmcnt(0)\ns_lshl_b32 s68, s{sWV}, 2\ns_add_u32 s68, s68, {L_FLW}\nv_mov_b32 v8, s68\nv_mov_b32 v9, 1\ns_waitcnt lgkmcnt(0)\nds_write_b32 v8, v9\ns_waitcnt lgkmcnt(0)')
    a.label('L_conv_n')
    a('s_cmp_lt_u32 s72, 8\ns_cbranch_scc1 L_conv')
    a('s_waitcnt lgkmcnt(0)')
    a.stamp(7)
    a('v_bfe_u32 v5, v0, 4, 1\nv_lshlrev_b32 v5, 15, v5\nv_bfe_u32 v6, v0, 1, 3\nv_lshl_add_u32 v5, v6, 12, v5')
    a(f'v_and_b32 v6, 1, v0\nv_lshrrev_b32 v11, 5, v0\nv_lshl_add_u32 v6, v6, 1, v11\ns_bfe_u32 s68, s{sJ}, 0x20001\nv_xor_b32 v6, s68, v6\nv_lshl_add_u32 v5, v6, 4, v5')
    a(f's_lshl_b32 s68, s{sG}, 18\ns_and_b32 s69, s{sCH}, 63\ns_lshl_b32 s69, s69, 6\ns_add_u32 s68, s68, s69\ns_add_u32 s68, s68, {WS_YT}')
    for tp in range(4):
        o = 64 + 4*tp; c0 = CA + 8*tp
        for i in range(4): a(f'v_cvt_pk_bf16_f32 v{o+i}, v{c0+2*i}, v{c0+2*i+1}')
        a(f'v_permlane16_swap_b32 v{o}, v{o+2}\nv_permlane16_swap_b32 v{o+1}, v{o+3}')
        a(f'buffer_store_dwordx4 {vr(o,4)}, v5, {srd(SWS)}, s68 offen sc1\ns_add_u32 s68, s68, 65536')
    a(f's_add_u32 s68, s{sJ}, s{sWV}\ns_add_u32 s68, s68, 12\ns_and_b32 s68, s68, 15\ns_lshl_b32 s68, s68, 17')
    for p in range(8):
        wo_piece(0, 's68', f's{sTB}', 1024*p); a('s_add_u32 s68, s68, 16384')
    a('s_waitcnt vmcnt(8)')
    a(f's_add_u32 s68, s81, {WS_YFLAG}\nv_mov_b32 v6, 0\ns_mov_b64 exec, 1\nbuffer_store_dword v9, v6, {srd(SWS)}, s68 offen sc1\ns_mov_b64 exec, -1')
    a.stamp(8)
    a('s_waitcnt vmcnt(1)\nds_write_b32 v8, v9 offset:16')
    a(f'v_lshlrev_b32 v10, 2, v0\ns_lshl_b32 s68, s{sG}, 8\ns_add_u32 s68, s68, {WS_YFLAG}')
    a.poll_global(28, 10, 's68')
    a.stamp(9)
    a(f's_lshl_b32 s68, s81, 10\ns_add_u32 s68, s68, {WS_YT}\ns_mov_b32 m0, s{sUB}')
    for p in range(4): a(f'buffer_load_dwordx4 v15, {srd(SWS)}, s68 offen offset:{1024*p} sc1 lds')
    a('v_and_b32 v5, 3, v0\nv_lshrrev_b32 v6, 5, v0\nv_lshl_add_u32 v6, v6, 2, v5\nv_lshlrev_b32 v6, 9, v6\nv_bfe_u32 v11, v0, 2, 2\nv_lshl_add_u32 v6, v11, 6, v6')
    a(f'v_lshl_add_u32 v6, v5, 4, v6\nv_bfe_u32 v12, v0, 4, 1\nv_lshl_add_u32 v6, v12, 3, v6\nv_add_u32 v20, s{sUB}, v6')
    for i in range(1, 4): a(f'v_xor_b32 v{20+i}, {16*i}, v20')
    a('v_lshl_add_u32 v5, v12, 2, v5\nv_lshlrev_b32 v5, 12, v5\nv_lshrrev_b32 v6, 5, v0\nv_lshl_add_u32 v6, v6, 2, v11\nv_lshl_add_u32 v5, v6, 4, v5')
    a(f's_lshl_b32 s68, s{sJ}, 19\ns_lshl_b32 s69, s{sWV}, 17\ns_add_u32 s68, s68, s69\ns_lshl_b32 s69, s{sG}, 7\ns_add_u32 s68, s68, s69\ns_add_u32 s68, s68, 2048')
    a('s_waitcnt vmcnt(0)')
    for i in range(4):
        for r2 in range(2): a(f'ds_read_b64_tr_b16 {vr(32+4*i+2*r2,2)}, v{20+i} offset:{256*r2}')
    for i in range(4):
        a(f's_waitcnt lgkmcnt({6-2*i})\nbuffer_store_dwordx4 {vr(32+4*i,4)}, v5, {srd(SOUT)}, s68 offen\ns_add_u32 s68, s68, 32768')
    if a.stamps:
        a('s_waitcnt vmcnt(0)'); a.stamp(10); a.dump_stamps(1)
    a.label('L_end')
    a('s_endpgm')

HEADER = open('concat_heads__linear_attn_block__ssm_conv_s4__prompt.s.ref').read().split('; Override')[0].rstrip('\n').split('\n') if True else []
def build(stamps=False, code_bytes=16384, verbose=False):
    a = K(stamps)
    prologue(a, code_bytes); g_path(a); s_path(a)
    body = hazard.fix(a.text(), verbose)
    return file_text(HEADER + ['; @launch grid=(256,1,1) block=(512,1,1) lds=163840'], [(NAME, body + '\n', kernel_desc(NAME, 256, 102, 256))])
def text_size(src):
    import subprocess, tempfile, os, re
    d = tempfile.mkdtemp(); open(d + '/a.s', 'w').write(src)
    subprocess.run(['clang', '-x', 'assembler', '-target', 'amdgcn-amd-amdhsa', '-mcpu=gfx950', '-c', d + '/a.s', '-o', d + '/a.o'], check=True)
    o = subprocess.run(['llvm-readelf', '-S', d + '/a.o'], capture_output=True, text=True).stdout
    return int(re.search(r'\.text\s+PROGBITS\s+\S+\s+\S+\s+(\S+)', o).group(1), 16)
if __name__ == '__main__':
    out = sys.argv[1]; stamps = 'stamps' in sys.argv
    n = text_size(build(stamps))
    print('code bytes', n)
    open(out, 'w').write(build(stamps, code_bytes=n, verbose='-v' in sys.argv))
```

```python
import sys, struct
from asmgen import *
import hazard

NAME = 'concat_heads__linear_attn_block__ssm_conv_s4__prompt_kernel'
def f2u(x): return struct.unpack('<I', struct.pack('<f', x))[0]
LOG2E = 1.4426950408889634
EPS = 1e-6

WS_KVFLAG, WS_OFLAG, WS_UFLAG, WS_YFLAG = 0, 4096, 8192, 12288
WS_ZP  = 65536
WS_KVP = 1 << 20
WS_O   = 4 << 20
WS_UT  = 8 << 20
WS_YT  = 12 << 20
WS_SIZE = 16 << 20
WS_STAMP = 16 << 20
SLOT = 40960
L_TAB = 40960; TABSZ = 8704
L_GS = 133120
L_U = 145408; USZ = 4608
L_FLG = L_U
L_FLW = L_U + USZ
L_SYN = L_U + 2*USZ
def wo_blk(b):
    if b < 7: return 75776 + 8192*b
    if b < 12: return 8192*(b-7)
    return L_TAB + TABSZ*(b-12)
SPIN = 400000

SX, SW, SWO, SU, SWS, SOUT = 36, 40, 44, 48, 52, 56
sXCD, sI, sCB, sRB, sG, sJ, sWV, sROT = 60, 61, 62, 63, 64, 65, 66, 67
def srd(n): return f's[{n}:{n+3}]'
def vr(a, n): return f'v[{a}:{a+n-1}]'

class K(Asm):
    def __init__(self, stamps=False, opts=()):
        super().__init__()
        self.stamps = stamps; self.opts = set(opts)
    def cstamp(self, idx):
        if not self.stamps: return
        self(f's_memtime s[98:99]\ns_waitcnt lgkmcnt(0)\ns_mov_b32 s{82+idx}, s98')
    def stamp(self, idx):
        if not self.stamps: return
        self(f's_memrealtime s[98:99]\ns_waitcnt lgkmcnt(0)\ns_mov_b32 s{82+idx}, s98')
    def dump_stamps(self, role):
        if not self.stamps: return
        a = self
        a(f's_lshl_b32 s68, s2, 3\ns_add_u32 s68, s68, s{sWV}\ns_add_u32 s68, s68, {4*role}\ns_lshl_b32 s68, s68, 6\ns_add_u32 s68, s68, {WS_STAMP}')
        a('v_mov_b32 v0, s68')
        for i in range(16): a(f'v_mov_b32 v{4+i}, s{82+i}')
        a('s_mov_b64 exec, 1')
        for i in range(4): a(f'global_store_dwordx4 v0, {vr(4+4*i,4)}, s[32:33] offset:{16*i}')
        a('s_mov_b64 exec, -1')
    def poll_global(self, vt, voff, soff, srd_=SWS, first_issued=False):
        a = self; L = a.newlabel('poll'); D = a.newlabel('polld')
        a(f's_mov_b32 s69, {SPIN}')
        if first_issued:
            a(f'v_cmp_ne_u32 vcc, 0, v{vt}\ns_cmp_eq_u64 vcc, -1\ns_cbranch_scc1 {D}')
        a.label(L)
        if srd_ == 'dbg': a(f'global_load_dword v{vt}, v{voff}, s[30:31] sc1')
        else: a(f'buffer_load_dword v{vt}, v{voff}, {srd(srd_)}, {soff} offen sc1')
        a(f's_waitcnt vmcnt(0)\nv_cmp_ne_u32 vcc, 0, v{vt}\ns_cmp_eq_u64 vcc, -1\ns_cbranch_scc1 {D}')
        a(f's_sub_u32 s69, s69, 1\ns_cmp_lg_u32 s69, 0\ns_cbranch_scc1 {L}')
        a.label(D)
    def arrive(self, idx, sgrp, slast, va, vt):
        a = self; N = a.newlabel('notlast')
        a(f'v_mov_b32 v{va}, {L_SYN + 8*idx}\nv_mov_b32 v{vt}, 1\ns_mov_b64 exec, 1\nds_add_rtn_u32 v{vt}, v{va}, v{vt}')
        a(f's_lshl_b32 s68, s{sgrp}, 8\ns_add_u32 s68, s68, {4096*idx}\ns_waitcnt lgkmcnt(0)\nv_readfirstlane_b32 s{slast}, v{vt}\nv_mov_b32 v{vt}, 1\nv_mov_b32 v{va}, 0\ns_nop 1')
        a(f's_cmp_eq_u32 s{slast}, 3\ns_cbranch_scc0 {N}\nbuffer_atomic_add v{vt}, v{va}, {srd(SWS)}, s68 offen sc1')
        a.label(N)
        a('s_mov_b64 exec, -1')
    def await_(self, idx, sgrp, slast, va, vt):
        a = self; N = a.newlabel('follow'); L = a.newlabel('gp'); D = a.newlabel('gpd'); E = a.newlabel('gpe')
        a(f's_cmp_eq_u32 s{slast}, 3\ns_cbranch_scc0 {N}')
        a(f's_lshl_b32 s68, s{sgrp}, 8\ns_add_u32 s68, s68, {4096*idx}\nv_mov_b32 v{va}, 0\ns_mov_b32 s69, {SPIN}\ns_mov_b64 exec, 1')
        a.label(L)
        a(f'buffer_load_dword v{vt}, v{va}, {srd(SWS)}, s68 offen sc1\ns_waitcnt vmcnt(0)\nv_cmp_eq_u32 vcc, 16, v{vt}\ns_cbranch_vccnz {D}')
        if 'gsleep' in a.opts: a('s_sleep 4')
        a(f's_sub_u32 s69, s69, 1\ns_cmp_lg_u32 s69, 0\ns_cbranch_scc1 {L}')
        a.label(D)
        a(f'v_mov_b32 v{va}, {L_SYN + 8*idx + 4}\nv_mov_b32 v{vt}, 1\nds_write_b32 v{va}, v{vt}\ns_mov_b64 exec, -1\ns_branch {E}')
        a.label(N)
        a(f'v_mov_b32 v{va}, {L_SYN + 8*idx + 4}')
        a.poll_lds(vt, va)
        a.label(E)
    def poll_lds(self, vt, vaddr):
        a = self; L = a.newlabel('lpoll'); D = a.newlabel('lpolld')
        a(f's_mov_b32 s69, {SPIN*8}')
        a.label(L)
        a(f'ds_read_b32 v{vt}, v{vaddr}\ns_waitcnt lgkmcnt(0)\nv_cmp_ne_u32 vcc, 0, v{vt}\ns_cmp_eq_u64 vcc, -1\ns_cbranch_scc1 {D}')
        a(f's_sub_u32 s69, s69, 1\ns_cmp_lg_u32 s69, 0\ns_cbranch_scc1 {L}')
        a.label(D)

def prologue(a, code_bytes):
    a.stamp(0)
    a('s_cmp_ge_u32 s2, 256\ns_cbranch_scc1 L_end')
    a('s_load_dwordx16 s[4:19], s[0:1], 0\ns_load_dwordx8 s[20:27], s[0:1], 64\ns_load_dwordx4 s[28:31], s[0:1], 96\ns_load_dwordx2 s[32:33], s[0:1], 112')
    a(f's_and_b32 s{sXCD}, s2, 7\ns_lshr_b32 s{sI}, s2, 3')
    a('v_lshrrev_b32 v1, 6, v0\nv_and_b32 v0, 63, v0\ns_getpc_b64 s[34:35]')
    a(f'v_readfirstlane_b32 s{sWV}, v1\ns_nop 3')
    nl = (code_bytes + 4095) // 4096
    a(f's_cmp_lg_u32 s{sWV}, 0\ns_cbranch_scc1 L_nopf')
    a(f'v_min_u32 v2, {nl-1}, v0\nv_lshlrev_b32 v2, 5, v2\nv_add_u32 v2, s{sI}, v2\nv_lshlrev_b32 v2, 7, v2\nv_min_u32 v2, {code_bytes-256}, v2')
    a('global_load_dword v250, v2, s[34:35]')
    a.label('L_nopf')
    a(f's_and_b32 s68, s{sXCD}, 3\ns_lshl_b32 s68, s68, 2\ns_and_b32 s69, s{sI}, 3\ns_add_u32 s{sCB}, s68, s69')
    a(f's_lshr_b32 s68, s{sXCD}, 2\ns_lshl_b32 s68, s68, 3\ns_lshr_b32 s70, s{sI}, 2\ns_add_u32 s{sRB}, s68, s70')
    a(f's_add_u32 s{sROT}, s69, s70')
    a(f's_lshl_b32 s68, s{sXCD}, 1\ns_lshr_b32 s69, s{sI}, 4\ns_add_u32 s{sG}, s68, s69\ns_and_b32 s{sJ}, s{sI}, 15')
    for n, sz in ((SX, 4<<20), (SW, 6<<20), (SWO, 2<<20), (SU, 4<<20), (SWS, WS_SIZE), (SOUT, 8<<20)):
        a(f's_mov_b32 s{n+2}, {sz}\ns_mov_b32 s{n+3}, 0x20000')
    a('s_waitcnt lgkmcnt(0)')
    for n, p in ((SX, 4), (SW, 6), (SWO, 8), (SU, 10), (SWS, 32), (SOUT, 28)):
        a(f's_mov_b32 s{n}, s{p}\ns_mov_b32 s{n+1}, s{p+1}')
    a(f's_cmp_ge_u32 s{sWV}, 4\ns_cbranch_scc1 L_S')

AQ, AK, AV = 16, 48, 80
FS = (112, 132)
def g_path(a):
    sRH, sHH, sHEAD, sSLOT, sCNT = 73, 74, 75, 76, 77
    a('s_setprio 2')
    a(f's_and_b32 s{sRH}, s{sWV}, 1\ns_lshr_b32 s{sHH}, s{sWV}, 1\ns_lshl_b32 s{sHEAD}, s{sCB}, 1\ns_add_u32 s{sHEAD}, s{sHEAD}, s{sHH}')
    a('v_lshlrev_b32 v15, 4, v0')
    a('v_mov_b32 v8, 0\nv_mov_b32 v9, 0\nv_mov_b32 v10, 0\nv_mov_b32 v11, 0')
    a('s_cmp_lg_u32 s2, 0\ns_cbranch_scc1 L_nozero')
    a(f's_lshl_b32 s68, s{sWV}, 12')
    for i in range(4): a(f'buffer_store_dwordx4 v[8:11], v15, {srd(SWS)}, s68 offen offset:{1024*i} sc1')
    a(f's_lshl_b32 s68, s{sWV}, 2\nv_mov_b32 v2, s68\nv_mov_b32 v3, 1\ns_waitcnt vmcnt(0)\ns_mov_b64 exec, 1')
    a('global_store_dword v2, v3, s[30:31] sc1\ns_mov_b64 exec, -1')
    a.label('L_nozero')
    a(f's_mul_i32 s68, s{sWV}, {USZ}\ns_add_u32 s68, s68, {L_U}\nv_lshlrev_b32 v2, 3, v0\nv_add_u32 v2, s68, v2\nds_write_b64 v2, v[8:9]')
    a('v_and_b32 v2, 31, v0\nv_lshrrev_b32 v3, 5, v0\nv_bfe_u32 v4, v0, 1, 3\nv_xor_b32 v4, v4, v3\nv_lshlrev_b32 v4, 4, v4\nv_lshl_add_u32 v4, v2, 7, v4')
    a(f's_lshl_b32 s68, s{sRH}, 13\nv_add_u32 v12, s68, v4')
    a('v_bfe_u32 v4, v0, 2, 2\nv_lshl_add_u32 v5, v3, 3, v4\nv_lshlrev_b32 v5, 7, v5')
    a('v_bfe_u32 v6, v0, 4, 1\nv_and_b32 v7, 3, v0\nv_lshlrev_b32 v7, 3, v7\nv_lshl_add_u32 v6, v6, 5, v7')
    a(f's_lshl_b32 s68, s{sHH}, 6\nv_add_u32 v6, s68, v6\nv_bfe_u32 v7, v0, 3, 1\nv_lshlrev_b32 v7, 6, v7\nv_xor_b32 v6, v6, v7')
    a('v_add_u32 v5, v5, v6\nv_add_u32 v13, 16384, v5')
    VX = (2, 3, 4, 5); VW = 6
    def setaddr(first=False):
        o = []
        o.append(f'v_add_u32 v{VX[0]}, s{sSLOT}, v12')
        o.append(f'v_add_u32 v{VW}, s{sSLOT}, v13')
        for k in (1, 2, 3): o.append(f'v_xor_b32 v{VX[k]}, {k<<5}, v{VX[0]}')
        return o
    a(f's_mov_b32 s{sSLOT}, 0\ns_mov_b32 s{sCNT}, 0')
    for l in setaddr(): a(l)
    a(f's_mov_b32 s72, {f2u(EPS)}\ns_mov_b32 s70, {f2u(LOG2E)}\ns_mov_b32 s71, {f2u(LOG2E)}')
    for r in range(AQ, AV): a(f'v_mov_b32 v{r}, s72')
    for r in range(AV, AV+32): a(f'v_mov_b32 v{r}, 0')
    def reads(ks):
        f = FS[ks & 1]
        w = lambda seg, r2: f'ds_read_b64_tr_b16 {vr(f+8+4*seg+2*r2, 2)}, v{VW} offset:{seg*8192+ks*2048+r2*512}'
        x = lambda mt: f'ds_read_b128 {vr(f+4*mt, 4)}, v{VX[ks]} offset:{4096*mt}'
        return [x(0), w(1,0), w(1,1), x(1), w(2,0), w(2,1), w(0,0), w(0,1)]
    def mfmas(ks):
        f = FS[ks & 1]
        X = lambda mt: vr(f+4*mt, 4); W = lambda seg: vr(f+8+4*seg, 4)
        mm = lambda d, x, y: f'v_mfma_f32_32x32x16_bf16 {vr(d,16)}, {x}, {y}, {vr(d,16)}'
        return [mm(AK, X(0), W(1)), mm(AK+16, X(1), W(1)), mm(AV, X(0), W(2)), mm(AV+16, X(1), W(2)), mm(AQ, W(0), X(0)), mm(AQ+16, W(0), X(1))]
    def group(ks, rd, extra=()):
        m = mfmas(ks); rd = list(rd); extra = list(extra)
        plan = [3, 3, 2, 0, 0, 0]
        for i in range(6):
            a(m[i])
            for _ in range(plan[i]):
                if rd: a(rd.pop(0))
            if i >= 3:
                for _ in range(4):
                    if extra: a(extra.pop(0))
    a('s_waitcnt lgkmcnt(0)\ns_barrier')
    a.stamp(1); a.cstamp(11)
    for l in reads(0): a(l)
    a('.p2align 3')
    a.label('L_p1')
    a('s_waitcnt lgkmcnt(0)\ns_nop 0'); group(0, reads(1))
    a('s_waitcnt lgkmcnt(0)\ns_nop 0'); group(1, reads(2))
    a('s_waitcnt lgkmcnt(0)\ns_nop 0')
    ex = [f's_add_u32 s{sSLOT}, s{sSLOT}, {SLOT}', f's_cmp_eq_u32 s{sSLOT}, {3*SLOT}', f's_cselect_b32 s{sSLOT}, 0, s{sSLOT}', f's_add_u32 s{sCNT}, s{sCNT}, 1'] + setaddr() + [f's_cmp_eq_u32 s{sCNT}, 16']
    group(2, reads(3), ex)
    a('s_waitcnt lgkmcnt(0)\ns_cbranch_scc1 L_p1_tail\ns_barrier')
    group(3, reads(0))
    a('s_branch L_p1')
    a.label('L_p1_tail')
    group(3, [])
    a.stamp(2); a.cstamp(12)
    T, ONES, KV, Z, CE = 152, 156, 160, 176, 192
    a(f'v_and_b32 v2, 3, v0\nv_lshlrev_b32 v2, 2, v2\nglobal_load_dword v14, v2, s[30:31] sc1')
    a(f'v_mov_b32 v{CE}, {f2u(-EPS*LOG2E)}\nv_mov_b32 v{CE+1}, {f2u(-EPS*LOG2E)}')
    for i in range(4): a(f'v_mov_b32 v{ONES+i}, 0x3f803f80')
    def phi(acc, dst):
        for u in range(8):
            x = acc + 2*u; t = T + 2*(u & 1)
            a(f'v_pk_fma_f32 {vr(t,2)}, {vr(x,2)}, s[70:71], {vr(CE,2)}')
            a(f'v_exp_f32 v{t}, v{t} clamp\nv_exp_f32 v{t+1}, v{t+1} clamp')
            a(f'v_max_f32 v{x}, s72, v{x}\nv_max_f32 v{x+1}, s72, v{x+1}')
            a(f'v_pk_add_f32 {vr(t,2)}, {vr(t,2)}, {vr(x,2)}')
            a(f'v_cvt_pk_bf16_f32 v{dst+u}, v{t}, v{t+1}')
    def pack(acc, dst, n=8):
        for u in range(n): a(f'v_cvt_pk_bf16_f32 v{dst+u}, v{acc+2*u}, v{acc+2*u+1}')
    for mt in range(2):
        pk, pv = FS[mt], FS[mt] + 8
        phi(AK + 16*mt, pk); pack(AV + 16*mt, pv)
        for h in range(2):
            c = '0' if (mt == 0 and h == 0) else None
            a(f'v_mfma_f32_32x32x16_bf16 {vr(KV,16)}, {vr(pk+4*h,4)}, {vr(pv+4*h,4)}, {c or vr(KV,16)}')
        for h in range(2):
            c = '0' if (mt == 0 and h == 0) else None
            a(f'v_mfma_f32_32x32x16_bf16 {vr(Z,16)}, {vr(pk+4*h,4)}, {vr(ONES,4)}, {c or vr(Z,16)}')
    a(f's_lshl_b32 s68, s{sWV}, 11\ns_add_u32 s68, s68, {L_GS}\nv_add_u32 v2, s68, v15\nv_xor_b32 v3, 2048, v2' if (L_GS // 2048) % 2 == 0 else
      f's_lshl_b32 s68, s{sWV}, 11\ns_add_u32 s69, s68, {L_GS}\nv_add_u32 v2, s69, v15\ns_xor_b32 s68, s68, 2048\ns_add_u32 s68, s68, {L_GS}\nv_add_u32 v3, s68, v15')
    a(f's_lshl_b32 s68, s{sWV}, 2\ns_add_u32 s69, s68, {L_FLG}\nv_mov_b32 v4, s69\ns_xor_b32 s68, s68, 4\ns_add_u32 s68, s68, {L_FLG}\nv_mov_b32 v5, s68\nv_mov_b32 v6, 1')
    a(f's_cmp_eq_u32 s{sRH}, 0\ns_nop 2\ns_cbranch_scc1 L_noswap')
    for i in range(8): a(f'v_swap_b32 v{KV+i}, v{KV+8+i}')
    a.label('L_noswap')
    a(f'ds_write_b128 v2, {vr(KV+8,4)}\nds_write_b128 v2, {vr(KV+12,4)} offset:1024\nds_write_b32 v4, v6')
    pack(Z, 112)
    a('v_and_b32 v7, 1, v0\nv_cmp_eq_u32 vcc, 1, v7\nv_lshrrev_b32 v8, 5, v0\nv_lshl_add_u32 v7, v8, 1, v7\nv_lshlrev_b32 v7, 4, v7')
    for i in range(4): a(f'v_cndmask_b32 v{112+i}, v{112+i}, v{116+i}, vcc')
    a(f's_lshl_b32 s68, s{sHEAD}, 5\ns_lshl_b32 s69, s{sRB}, 1\ns_add_u32 s69, s69, s{sRH}\ns_add_u32 s78, s68, s69')
    a(f's_lshl_b32 s68, s78, 6\ns_add_u32 s68, s68, {WS_ZP}\ns_mov_b32 exec_lo, 3\ns_mov_b32 exec_hi, 3')
    a(f'buffer_store_dwordx4 v[112:115], v7, {srd(SWS)}, s68 offen sc1\ns_mov_b64 exec, -1')
    a.poll_lds(8, 5)
    a(f'ds_read_b128 {vr(KV+8,4)}, v3\nds_read_b128 {vr(KV+12,4)}, v3 offset:1024')
    a(f's_lshl_b32 s68, s{sHEAD}, 1\ns_add_u32 s68, s68, s{sRH}\ns_lshl_b32 s79, s68, 14\ns_add_u32 s79, s79, {WS_KVP}')
    a(f's_lshl_b32 s68, s{sRB}, 10\ns_add_u32 s68, s68, s79\ns_waitcnt lgkmcnt(0)')
    for i in range(4): a(f'v_pk_add_f32 {vr(KV+2*i,2)}, {vr(KV+2*i,2)}, {vr(KV+8+2*i,2)}')
    pack(KV, 116, 4)
    a(f'buffer_store_dwordx4 v[116:119], v15, {srd(SWS)}, s68 offen sc1')
    a.stamp(3)
    PQ = 48
    phi(AQ, PQ); phi(AQ + 16, PQ + 8)
    SEL = 64
    a('v_and_b32 v7, 31, v0\nv_lshrrev_b32 v8, 5, v0\nv_lshlrev_b32 v8, 2, v8\nv_sub_u32 v7, v7, v8')
    a('v_mov_b32 v9, 0x3f80\nv_mov_b32 v10, 0x3f800000')
    for u in range(4):
        m0 = 8*(u >> 1) + 2*(u & 1)
        a(f'v_cmp_eq_u32 vcc, {m0}, v7\nv_cmp_eq_u32 s[80:81], {m0+1}, v7\nv_cndmask_b32 v{SEL+u}, 0, v9, vcc\nv_cndmask_b32 v{SEL+u}, v{SEL+u}, v10, s[80:81]')
    a('s_waitcnt vmcnt(0)')
    a('v_and_b32 v2, 3, v0\nv_lshlrev_b32 v2, 2, v2')
    a.poll_global(14, 2, None, 'dbg', first_issued=True)
    a.arrive(0, sCB, 77, 2, 14)
    a.stamp(4)
    a.await_(0, sCB, 77, 2, 14)
    a.stamp(5)
    ZA, PB, SUM = 68, 80, 160
    a(f'v_and_b32 v2, 31, v0\nv_lshlrev_b32 v2, 6, v2\nv_lshrrev_b32 v3, 5, v0\nv_lshl_add_u32 v2, v3, 5, v2\ns_lshl_b32 s68, s{sHEAD}, 11\ns_add_u32 s68, s68, {WS_ZP}')
    a(f'buffer_load_dwordx4 {vr(ZA,4)}, v2, {srd(SWS)}, s68 offen sc1\nbuffer_load_dwordx4 {vr(ZA+4,4)}, v2, {srd(SWS)}, s68 offen offset:16 sc1')
    a(f's_lshl_b32 s69, s{sRB}, 11')
    for p in range(8):
        a(f's_and_b32 s69, s69, 0x3fff\ns_add_u32 s68, s69, s79')
        a(f'buffer_load_dwordx4 {vr(PB+8*p,4)}, v15, {srd(SWS)}, s68 offen sc1\nbuffer_load_dwordx4 {vr(PB+8*p+4,4)}, v15, {srd(SWS)}, s68 offen offset:1024 sc1')
        a('s_add_u32 s69, s69, 2048')
    DEN = (176, 192); NUM = (16, 32)
    a('s_waitcnt vmcnt(16)')
    for mt in range(2):
        a(f'v_mfma_f32_32x32x16_bf16 {vr(DEN[mt],16)}, {vr(ZA,4)}, {vr(PQ+8*mt,4)}, 0')
        a(f'v_mfma_f32_32x32x16_bf16 {vr(DEN[mt],16)}, {vr(ZA+4,4)}, {vr(PQ+8*mt+4,4)}, {vr(DEN[mt],16)}')
    for p in range(16):
        a(f's_waitcnt vmcnt({15-p})')
        a(f'v_mfma_f32_32x32x16_bf16 {vr(SUM,16)}, {vr(SEL,4)}, {vr(PB+4*p,4)}, {"0" if p == 0 else vr(SUM,16)}')
    for mt in range(2):
        d = DEN[mt]
        for i in range(4): a(f'v_pk_add_f32 {vr(d+2*i,2)}, {vr(d+2*i,2)}, {vr(d+8+2*i,2)}')
        for i in range(2): a(f'v_pk_add_f32 {vr(d+2*i,2)}, {vr(d+2*i,2)}, {vr(d+4+2*i,2)}')
        a(f'v_pk_add_f32 {vr(d,2)}, {vr(d,2)}, {vr(d+2,2)}\nv_add_f32 v{d}, v{d}, v{d+1}')
    pack(SUM, 112, 4)
    a(f's_lshl_b32 s68, s{sWV}, 10\ns_add_u32 s68, s68, {L_GS+8192}\nv_add_u32 v2, s68, v15\nds_write_b128 v2, v[112:115]\nds_write_b32 v4, v6 offset:16')
    a(f's_lshl_b32 s68, s{sHH}, 11\ns_add_u32 s68, s68, {L_GS+8192}\nv_add_u32 v3, s68, v15\nv_add_u32 v5, 16, v5')
    a(f'v_permlane32_swap_b32 v{DEN[0]}, v{DEN[1]}\nv_add_f32 v7, v{DEN[0]}, v{DEN[1]}\nv_add_f32 v7, s72, v7\nv_rcp_f32 v7, v7')
    a('v_mov_b32 v8, v7\nv_mov_b32 v10, v7\nv_permlane32_swap_b32 v8, v10')
    a.poll_lds(9, 5)
    a('ds_read_b128 v[116:119], v3\nds_read_b128 v[120:123], v3 offset:1024\ns_waitcnt lgkmcnt(0)')
    for mt in range(2):
        a(f'v_mfma_f32_32x32x16_bf16 {vr(NUM[mt],16)}, v[116:119], {vr(PQ+8*mt,4)}, 0')
        a(f'v_mfma_f32_32x32x16_bf16 {vr(NUM[mt],16)}, v[120:123], {vr(PQ+8*mt+4,4)}, {vr(NUM[mt],16)}')
    a(f's_lshl_b32 s68, s{sRB}, 1\ns_add_u32 s68, s68, s{sRH}\ns_lshl_b32 s80, s68, 17\ns_lshl_b32 s69, s{sHEAD}, 11\ns_add_u32 s80, s80, s69\ns_add_u32 s80, s80, {WS_O}')
    for mt in range(2):
        n = NUM[mt]; r = (8, 10)[mt]; o = 124 + 8*mt
        for u in range(8):
            a(f'v_pk_mul_f32 {vr(n+2*u,2)}, {vr(n+2*u,2)}, {vr(r,2)} op_sel_hi:[1,0]')
            a(f'v_cvt_pk_bf16_f32 v{o+u}, v{n+2*u}, v{n+2*u+1}')
            if u & 3 == 3: a(f'buffer_store_dwordx4 {vr(o+u-3,4)}, v15, {srd(SWS)}, s80 offen offset:{1024*(u>>2)} sc1')
        if mt == 0: a('s_add_u32 s80, s80, 65536')
    a.stamp(6)
    VB = (2, 3, 12)
    a('v_lshrrev_b32 v3, 5, v0\nv_bfe_u32 v7, v0, 2, 2\nv_lshl_add_u32 v7, v3, 2, v7\nv_lshlrev_b32 v7, 7, v7')
    a('v_bfe_u32 v8, v0, 4, 1\nv_and_b32 v9, 1, v0\nv_lshl_add_u32 v8, v8, 1, v9\nv_bfe_u32 v9, v0, 1, 1\nv_lshl_add_u32 v8, v8, 1, v9\nv_lshlrev_b32 v8, 3, v8')
    a('v_bfe_u32 v9, v0, 3, 1\nv_lshl_add_u32 v8, v9, 6, v8\nv_add_u32 v2, v7, v8')
    a('v_add_u32 v3, 0x10000, v2\nv_add_u32 v12, 0x20000, v2\nv_xor_b32 v7, 64, v2\nv_xor_b32 v8, 64, v3\nv_xor_b32 v13, 64, v12')
    VB = ((2, 7), (3, 8), (12, 13))
    a(f'v_and_b32 v9, 3, v0\nv_lshlrev_b32 v9, 2, v9\nv_add_u32 v9, {L_FLW}, v9')
    a('s_waitcnt vmcnt(0)')
    a.arrive(1, sRB, 77, 10, 14)
    a.stamp(7)
    a.await_(1, sG, 77, 10, 14)
    a.stamp(13)
    a.poll_lds(14, 9)
    a.stamp(8)
    ACC, AR, BF = (16, 32), 48, (80, 88)
    a(f's_lshl_b32 s78, s{sG}, 2\ns_add_u32 s78, s78, s{sWV}\ns_lshl_b32 s79, s78, 16\ns_add_u32 s79, s79, {WS_O}\ns_lshl_b32 s80, s{sJ}, 12')
    def aload(i):
        o = []
        if i % 4 == 0: o.append(f's_add_u32 s81, s80, s79\ns_add_u32 s80, s80, 4096\ns_and_b32 s80, s80, 0xffff')
        o.append(f'buffer_load_dwordx4 {vr(AR+4*(i%8),4)}, v15, {srd(SWS)}, s81 offen offset:{1024*(i%4)} sc1')
        return o
    def bread(i):
        o = []
        for t in range(2):
            for r2 in range(2):
                off = wo_blk(i >> 2) + (i & 3)*2048 + r2*1024
                o.append(f'ds_read_b64_tr_b16 {vr(BF[i&1]+4*t+2*r2,2)}, v{VB[off>>16][t]} offset:{off & 0xffff}')
        return o
    for i in range(7):
        for l in aload(i): a(l)
    for l in bread(0): a(l)
    for i in range(64):
        if i == 47:
            a('v_add_u32 v9, 16, v9'); a.poll_lds(14, 9)
        a(f's_waitcnt vmcnt({min(6, 63-i)}) lgkmcnt(0)')
        rd = bread(i+1) if i < 63 else []
        for t in range(2):
            a(f'v_mfma_f32_32x32x16_bf16 {vr(ACC[t],16)}, {vr(BF[i&1]+4*t,4)}, {vr(AR+4*(i%8),4)}, {"0" if i == 0 else vr(ACC[t],16)}')
            if t == 0:
                for l in rd: a(l)
            elif i + 7 < 64:
                for l in aload(i+7): a(l)
    a.stamp(9)
    a(f'v_and_b32 v2, 15, v0\nv_lshlrev_b32 v2, 12, v2\nv_bfe_u32 v3, v0, 4, 1\nv_lshl_add_u32 v2, v3, 5, v2\nv_lshrrev_b32 v3, 5, v0\nv_lshl_add_u32 v2, v3, 4, v2')
    a(f's_lshl_b32 s68, s78, 17\ns_lshl_b32 s69, s{sJ}, 7\ns_add_u32 s68, s68, s69\ns_add_u32 s69, s68, 65536')
    for t in range(2):
        o = 48 + 8*t
        pack(ACC[t], o)
        for i in range(4): a(f'v_permlane16_swap_b32 v{o+i}, v{o+4+i}')
        a(f'buffer_store_dwordx4 {vr(o,4)}, v2, {srd(SOUT)}, s68 offen offset:{64*t}')
        a(f'buffer_store_dwordx4 {vr(o+4,4)}, v2, {srd(SOUT)}, s69 offen offset:{64*t}')
    if a.stamps:
        a('s_waitcnt vmcnt(0)'); a.stamp(10); a.dump_stamps(0)
    a('s_endpgm')

def s_path(a):
    sSLOT, sCNT, sXO, sWOF, sM, sCH, sUB, sTB = 73, 74, 75, 76, 77, 78, 79, 80
    a.label('L_S')
    a(f's_sub_u32 s{sWV}, s{sWV}, 4')
    a('v_lshrrev_b32 v3, 3, v0\nv_and_b32 v4, 7, v0')
    a(f's_lshl_b32 s68, s{sRB}, 7\ns_lshl_b32 s69, s{sWV}, 5\ns_add_u32 s68, s68, s69\nv_add_u32 v5, s68, v3\nv_lshlrev_b32 v5, 11, v5')
    a('v_lshrrev_b32 v6, 4, v0\nv_xor_b32 v6, v6, v4\nv_lshl_add_u32 v10, v6, 4, v5\nv_xor_b32 v11, 64, v10\nv_add_u32 v11, 16384, v11\nv_add_u32 v12, 32768, v10\nv_add_u32 v13, 32768, v11')
    a(f's_lshl_b32 s69, s{sWV}, 4\nv_add_u32 v5, s69, v3\nv_mul_u32_u24 v5, 6144, v5\nv_bfe_u32 v6, v0, 4, 1\nv_lshlrev_b32 v6, 2, v6\nv_xor_b32 v16, v6, v4')
    a(f'v_lshl_add_u32 v5, v16, 4, v5\ns_lshl_b32 s68, s{sCB}, 7\nv_add_u32 v14, s68, v5\nv_add_u32 v15, {8*6144}, v14')
    a(f's_mov_b32 s{sSLOT}, 0\ns_mov_b32 s{sCNT}, 0\ns_lshl_b32 s81, s{sXCD}, 1')
    def issue():
        a(f's_add_u32 s68, s{sCNT}, s{sROT}\ns_and_b32 s68, s68, 3\ns_and_b32 s69, s{sCNT}, 12\ns_add_u32 s68, s68, s69\ns_add_u32 s68, s68, s81\ns_and_b32 s68, s68, 15')
        a(f's_lshl_b32 s{sXO}, s68, 7\ns_mul_i32 s{sWOF}, s68, {64*6144}')
        a(f's_lshl_b32 s{sM}, s{sWV}, 12\ns_add_u32 s{sM}, s{sM}, s{sSLOT}')
        if 'samek' in a.opts: a(f's_mov_b32 s{sXO}, 0\ns_mov_b32 s{sWOF}, 0')
        for p in range(4):
            if 'nodma' in a.opts: continue
            a(f's_add_u32 m0, s{sM}, {1024*p}\nbuffer_load_dwordx4 v{10+p}, {srd(SX)}, s{sXO} offen lds')
        a(f's_lshl_b32 s{sM}, s{sWV}, 11\ns_add_u32 s{sM}, s{sM}, s{sSLOT}')
        for seg in (1, 2, 0):
            a(f's_add_u32 s68, s{sWOF}, {2048*seg}')
            for p in range(2):
                if 'nodma' in a.opts: continue
                a(f's_add_u32 m0, s{sM}, {16384+8192*seg+1024*p}\nbuffer_load_dwordx4 v{14+p}, {srd(SW)}, s68 offen lds')
        a(f's_add_u32 s{sCNT}, s{sCNT}, 1\ns_add_u32 s{sSLOT}, s{sSLOT}, {SLOT}\ns_cmp_eq_u32 s{sSLOT}, {3*SLOT}\ns_cselect_b32 s{sSLOT}, 0, s{sSLOT}')
    a(f's_mov_b32 s72, 0')
    a.label('L_ld')
    issue()
    a(f's_cmp_eq_u32 s{sCNT}, 1\ns_cbranch_scc1 L_ld')
    a(f's_cmp_eq_u32 s{sCNT}, 16\ns_cbranch_scc1 L_ld_done\ns_waitcnt vmcnt(10)\ns_barrier\ns_branch L_ld')
    a.label('L_ld_done')
    a(f's_mul_i32 s{sUB}, s{sWV}, {USZ}\ns_add_u32 s{sUB}, s{sUB}, {L_U+512}\ns_mul_i32 s{sTB}, s{sWV}, {TABSZ}\ns_add_u32 s{sTB}, s{sTB}, {L_TAB}')
    a(f's_lshl_b32 s68, s{sJ}, 7\ns_lshl_b32 s69, s{sWV}, 5\ns_add_u32 s68, s68, s69\nv_add_u32 v5, s68, v3\nv_lshlrev_b32 v5, 11, v5')
    a('v_bfe_u32 v6, v0, 4, 1\nv_lshlrev_b32 v6, 1, v6\nv_xor_b32 v6, v6, v4\nv_lshl_add_u32 v10, v6, 4, v5\nv_xor_b32 v11, 64, v10')
    a(f's_lshl_b32 s68, s{sG}, 7')
    for p in range(4):
        a(f's_add_u32 m0, s{sUB}, {1024*p}\nbuffer_load_dwordx4 v{10+(p&1)}, {srd(SU)}, s68 offen lds\ns_add_u32 s68, s68, 16384')
    a(f's_lshl_b32 s{sCH}, s{sG}, 6\ns_lshl_b32 s68, s{sJ}, 2\ns_add_u32 s{sCH}, s{sCH}, s68\ns_add_u32 s{sCH}, s{sCH}, s{sWV}')
    PR = 20
    a(f's_lshl_b32 s68, s{sCH}, 8\nv_lshlrev_b32 v5, 2, v0\nv_add_u32 v5, s68, v5\ns_lshl_b32 s68, s{sCH}, 1\nv_mov_b32 v6, s68\nv_and_b32 v7, 3, v0\nv_lshlrev_b32 v7, 2, v7')
    for i in range(6): a(f'global_load_dword v{PR+i}, v5, s[{12+2*i}:{13+2*i}]')
    a(f'global_load_ushort v26, v6, s[24:25]\nglobal_load_ushort v27, v6, s[26:27]\nglobal_load_dword v28, v7, s[30:31] sc1')
    a('s_waitcnt vmcnt(23)\ns_barrier\ns_waitcnt vmcnt(13)\ns_barrier')
    a.stamp(1)
    a('v_lshrrev_b32 v5, 4, v0\nv_bfe_u32 v6, v0, 2, 2\nv_lshl_add_u32 v6, v5, 3, v6\nv_lshlrev_b32 v6, 7, v6\nv_and_b32 v8, 3, v0\nv_lshl_add_u32 v6, v8, 3, v6')
    a(f'v_bfe_u32 v8, v0, 3, 2\nv_lshl_add_u32 v6, v8, 5, v6\nv_add_u32 v6, s{sUB}, v6')
    for cq in range(1, 4): a(f'v_xor_b32 v{9+cq}, {cq<<5}, v6')
    a(f'v_and_b32 v8, 15, v0\nv_lshlrev_b32 v8, 12, v8\nv_lshl_add_u32 v8, v5, 4, v8')
    a(f's_lshl_b32 s68, s{sG}, 18\ns_lshl_b32 s69, s{sJ}, 8\ns_add_u32 s68, s68, s69\ns_lshl_b32 s69, s{sWV}, 6\ns_add_u32 s68, s68, s69\ns_add_u32 s68, s68, {WS_UT}')
    a('s_waitcnt vmcnt(9)')
    for cq in range(4):
        for r2 in range(2): a(f'ds_read_b64_tr_b16 {vr(32+4*cq+2*r2,2)}, v{6 if cq == 0 else 9+cq} offset:{512*r2}')
    for cq in range(4):
        a(f's_waitcnt lgkmcnt({6-2*cq})\nbuffer_store_dwordx4 {vr(32+4*cq,4)}, v8, {srd(SWS)}, s68 offen sc1\ns_add_u32 s68, s68, 65536')
    a.stamp(2)
    a(f'v_lshlrev_b32 v17, 11, v3\nv_lshl_add_u32 v17, v16, 4, v17\ns_lshl_b32 s68, s{sJ}, 7\nv_add_u32 v17, s68, v17')
    def wo_piece(b, sp, lds_s, lds_c):
        a(f's_add_u32 m0, {lds_s}, {lds_c}\nbuffer_load_dwordx4 v17, {srd(SWO)}, {sp} offen lds')
    def wo_block_shared(b):
        a(f's_add_u32 s68, s{sJ}, {b}\ns_and_b32 s68, s68, 15\ns_lshl_b32 s68, s68, 17\ns_add_u32 s68, s68, s71')
        wo_piece(b, 's68', 's70', wo_blk(b)); a('s_add_u32 s68, s68, 16384'); wo_piece(b, 's68', 's70', wo_blk(b) + 1024)
    a(f's_lshl_b32 s70, s{sWV}, 11\ns_lshl_b32 s71, s{sWV}, 15')
    DT, KA, YF, XF = 29, 48, 64, 96
    AR_, AI, BR, BI, CR, CI = 32, 33, 34, 35, 36, 37
    E1, E8, E256, TT = 38, 40, 42, 44
    XS = 128
    a('s_waitcnt vmcnt(4)')
    hi = struct.unpack('<f', struct.pack('<I', f2u(LOG2E) & 0xffffff00))[0]
    a(f'v_lshlrev_b32 v26, 16, v26\nv_mul_f32 v30, {f2u(hi)}, v26\nv_rndne_f32 v31, v30\nv_sub_f32 v30, v30, v31\ns_mov_b32 s68, {f2u(LOG2E-hi)}\nv_fma_f32 v30, v26, s68, v30')
    a(f'v_exp_f32 v30, v30\nv_cvt_i32_f32 v31, v31\nv_ldexp_f32 v30, v30, v31\nv_cvt_pk_bf16_f32 v30, v30, v30\nv_lshlrev_b32 v{DT}, 16, v30')
    a(f'v_lshlrev_b32 v27, 16, v27\nv_cmp_eq_u32 vcc, 0, v0')
    for i in range(1, 16): a(f'v_mov_b32 v{KA+i}, 0')
    a(f'v_cndmask_b32 v{KA}, 0, v27, vcc')
    a('v_and_b32 v5, 31, v0\nv_lshrrev_b32 v6, 5, v0\nv_lshlrev_b32 v6, 4, v6')
    a(f'v_add_u32 v6, s{sTB}, v6\nv_mul_u32_u24 v8, 272, v5\nv_add_u32 v18, v8, v6')
    def mrow(half, rho): return 8*(rho >> 2) + 4*half + (rho & 3)
    base_of = {}
    seg1 = [0,0,2,4,4,4,6,8,8]
    for half in range(2):
        for rho in range(9): base_of[mrow(half, rho)] = rho if half == 0 else 256 + seg1[rho]
        for k in range(3): base_of[mrow(half, 9+k)] = 512 + 256*half + 4*k
        for k in range(2):
            base_of[mrow(half, 12+k)] = 1024 + 256*half + 8*k
            base_of[mrow(half, 14+k)] = 1536 + 256*half + 8*k
    pos = {}
    for m in range(32): pos.setdefault(base_of[m], m)
    a('v_mov_b32 v19, v18')
    for m in range(32):
        if pos[base_of[m]] != m:
            a(f'v_cmp_eq_u32 vcc, {m}, v5\nv_add_u32 v8, {272*pos[base_of[m]]}, v6\nv_cndmask_b32 v19, v19, v8, vcc')
    def cmul(d, x, e):
        a(f'v_pk_mul_f32 {vr(TT,2)}, {vr(x,2)}, {vr(e,2)} op_sel_hi:[0,1]')
        a(f'v_pk_fma_f32 {vr(d,2)}, {vr(x,2)}, {vr(e,2)}, {vr(TT,2)} op_sel:[1,1,0] op_sel_hi:[1,0,1] neg_lo:[0,1,0]')
    cnt = [0]
    TOFF = 16384
    def put(x, row, neg):
        t = 46 + (cnt[0] & 1); cnt[0] += 1
        a(f'v_cvt_pk_bf16_f32 v{t}, v{x}, {"-" if neg else ""}v{x+1}\nds_write_addtid_b32 v{t} offset:{TOFF + 272*row}')
    a(f's_mov_b32 s72, 0')
    a('.p2align 3')
    a.label('L_kgen')
    for i in range(6): a(f'v_lshlrev_b32 v{32+i}, 16, v{PR+i}\nv_lshrrev_b32 v{PR+i}, 16, v{PR+i}')
    a(f's_sub_u32 m0, s{sTB}, {TOFF}')
    for r in (AR_, AI, BR, BI): a(f'v_mul_f32 v{r}, v{DT}, v{r}')
    a(f'v_mul_f32 v{AR_}, {f2u(LOG2E)}, v{AR_}\nv_mul_f32 v{AI}, 0.15915494, v{AI}')
    cmul(XS, BR, CR)
    for L, e in ((8, E8), (1, E1), (256, E256)):
        if L == 1: a(f'v_exp_f32 v30, v{AR_}\nv_fract_f32 v31, v{AI}')
        else: a(f'v_mul_f32 v30, {f2u(float(L))}, v{AR_}\nv_mul_f32 v31, {f2u(float(L))}, v{AI}\nv_exp_f32 v30, v30\nv_fract_f32 v31, v31')
        a(f'v_cos_f32 v{e}, v31\nv_sin_f32 v{e+1}, v31\ns_nop 0\nv_pk_mul_f32 {vr(e,2)}, {vr(e,2)}, v[30:31] op_sel_hi:[1,0]')
    a(f'v_mov_b32 v46, 0x3f80\nds_write_addtid_b32 v46 offset:{TOFF}'); cnt[0] = 1
    put(E8, 1, False)
    YC = 146
    cmul(YC, E8, E8); put(YC, 2, False)
    for n in range(3, 32): cmul(YC, YC, E8); put(YC, n, False)
    for k in range(8): a(f'ds_read_b128 {vr(YF+4*k,4)}, v18 offset:{32*k}')
    put(XS, pos[0], True)
    for k in range(1, 9): cmul(XS+2*k, XS+2*k-2, E1); put(XS+2*k, pos[k], True)
    for blk in range(1, 8):
        ks = (0,2,4,6,8) if blk == 1 else (0,4,8) if blk < 4 else (0,8)
        for k in ks: cmul(XS+2*k, XS+2*k, E256); put(XS+2*k, pos[256*blk+k], True)
    for k in range(8): a(f'ds_read_b128 {vr(XF+4*k,4)}, v19 offset:{32*k}')
    for k in range(8):
        a(f's_waitcnt lgkmcnt({7-k})\nv_mfma_f32_32x32x16_bf16 {vr(KA,16)}, {vr(XF+4*k,4)}, {vr(YF+4*k,4)}, {vr(KA,16)}')
    a('s_cmp_eq_u32 s72, 1\ns_cbranch_scc1 L_kgen_done')
    a('s_waitcnt vmcnt(0)')
    a.poll_global(28, 7, None, 'dbg', first_issued=True)
    a(f's_lshl_b32 s68, s{sG}, 8\ns_lshl_b32 s69, s{sJ}, 4\ns_add_u32 s68, s68, s69\ns_lshl_b32 s69, s{sWV}, 2\ns_add_u32 s81, s68, s69')
    a.arrive(2, sG, 73, 8, 9)
    a.stamp(3)
    for b in range(0, 3): wo_block_shared(b)
    a('s_mov_b32 s72, 1\ns_branch L_kgen')
    a.label('L_kgen_done')
    a.stamp(4)
    a.await_(2, sG, 73, 8, 9)
    a.stamp(5)
    a(f'v_lshlrev_b32 v15, 4, v0\ns_lshl_b32 s68, s{sCH}, 12\ns_add_u32 s68, s68, {WS_UT}\ns_mov_b32 m0, s{sUB}')
    for p in range(4): a(f'buffer_load_dwordx4 v15, {srd(SWS)}, s68 offen offset:{1024*p} sc1 lds')
    CB = 4160
    a(f's_add_u32 s68, s{sTB}, {4080-3072}\nv_sub_u32 v5, s68, v15')
    a('v_and_b32 v6, 1, v0\nv_cmp_eq_u32 vcc, 1, v6')
    def chunk(g, copy, pairs, t):
        for i, (lo, hi_) in enumerate(pairs): a(f'v_cvt_pk_bf16_f32 v{t+i}, v{lo}, v{hi_}')
        a(f'ds_write_b128 v5, {vr(t,4)} offset:{CB*copy + 1024*(3-g)}')
    k = lambda r: KA + r
    chunk(0, 0, [(k(7),k(6)), (k(5),k(4)), (k(3),k(2)), (k(1),k(0))], 64)
    chunk(0, 1, [(k(8),k(7)), (k(6),k(5)), (k(4),k(3)), (k(2),k(1))], 68)
    chunk(1, 0, [(k(11),k(11)), (k(10),k(10)), (k(10),k(9)), (k(9),k(9))], 72)
    chunk(1, 1, [(k(11),k(11)), (k(11),k(10)), (k(10),k(10)), (k(9),k(9))], 76)
    for g in (2, 3):
        z0, z8 = k(8+2*g), k(9+2*g); X = 30 + (g & 1)
        a(f'v_cndmask_b32 v{X}, v{z0}, v{z8}, vcc')
        chunk(g, 0, [(z8,z8), (z8,X), (z0,z0), (z0,z0)], 64+8*g)
        chunk(g, 1, [(z8,z8), (z8,z8), (X,z0), (z0,z0)], 68+8*g)
    a(f'v_mov_b32 v8, 0\nv_cvt_pk_bf16_f32 v9, v{KA}, v8\nv_cmp_eq_u32 vcc, 0, v0\nv_and_b32 v6, 7, v0\nv_lshlrev_b32 v6, 2, v6\nv_cndmask_b32 v9, 0, v9, vcc')
    a(f'v_cmp_gt_u32 vcc, 8, v0\nv_mov_b32 v11, {CB}\nv_add_u32 v6, s{sTB}, v6\nv_cndmask_b32 v11, 0, v11, vcc\nv_add_u32 v6, v6, v11\ns_mov_b64 exec, 0xffff\nds_write_b32 v6, v9 offset:4096\ns_mov_b64 exec, -1')
    for b in range(3, 7): wo_block_shared(b)
    a(f'v_and_b32 v6, 3, v0\nv_lshlrev_b32 v6, 2, v6\nv_add_u32 v6, {L_FLG}, v6')
    a.poll_lds(9, 6)
    for b in range(7, 12): wo_block_shared(b)
    CA, AF, BF = 32, 64, 96
    VA = (10, 11, 12, 13); VBu = 14
    a('v_and_b32 v5, 15, v0\nv_lshrrev_b32 v6, 4, v0\nv_and_b32 v8, 1, v0\nv_add_u32 v9, v5, v8\nv_lshlrev_b32 v9, 1, v9\nv_lshlrev_b32 v11, 4, v6\nv_sub_u32 v9, v11, v9')
    a(f'v_xor_b32 v8, 1, v8\nv_mul_u32_u24 v8, {CB}, v8\nv_add_u32 v9, v9, v8\ns_add_u32 s68, s{sTB}, {2*(2048-16)-512}\nv_add_u32 v{VA[0]}, s68, v9')
    for i in range(1, 4): a(f'v_subrev_u32 v{VA[i]}, {1024*i}, v{VA[0]}')
    a(f'v_lshlrev_b32 v5, 5, v5\nv_lshl_add_u32 v5, v6, 4, v5\ns_sub_u32 s68, s{sUB}, 32\nv_add_u32 v{VBu}, s68, v5')
    for i in range(32): a(f'v_mov_b32 v{CA+i}, 0')
    def rdA(D):
        o = 128*(1 - (D & 1))
        return [f'ds_read2_b32 {vr(AF+4*D,2)}, v{VA[D>>1]} offset0:{o} offset1:{o+1}', f'ds_read2_b32 {vr(AF+4*D+2,2)}, v{VA[D>>1]} offset0:{o+2} offset1:{o+3}']
    def rdB(t): return f'ds_read_b128 {vr(BF+4*t,4)}, v{VBu} offset:{512*t}'
    for D in range(7, 0, -1):
        for l in rdA(D): a(l)
    a('s_waitcnt vmcnt(18) lgkmcnt(0)')
    a.stamp(6)
    for t in range(8): a(rdB(t))
    for l in rdA(0): a(l)
    a('s_mov_b32 s72, 0')
    a('.p2align 3')
    a.label('L_conv')
    a(f'v_subrev_u32 v{VA[3]}, 64, v{VA[3]}\nv_subrev_u32 v{VA[2]}, 64, v{VA[2]}\nv_subrev_u32 v{VA[1]}, 64, v{VA[1]}\nv_subrev_u32 v{VA[0]}, 64, v{VA[0]}\nv_subrev_u32 v{VBu}, 64, v{VBu}\ns_add_u32 s72, s72, 1')
    waits = {7: 9, 6: 10, 5: 11, 4: 6}
    for D in range(7, -1, -1):
        if D in waits: a(f's_waitcnt lgkmcnt({waits[D]})\ns_nop 0')
        for t in range(8 - D):
            a(f'v_mfma_f32_16x16x32_bf16 {vr(CA+4*(D+t),4)}, {vr(AF+4*D,4)}, {vr(BF+4*t,4)}, {vr(CA+4*(D+t),4)}')
            if D == 0: a(rdB(t))
        for l in rdA(D): a(l)
    a('s_cmp_eq_u32 s72, 5\ns_cbranch_scc0 L_conv_n')
    a(f's_waitcnt vmcnt(0)\ns_lshl_b32 s68, s{sWV}, 2\ns_add_u32 s68, s68, {L_FLW}\nv_mov_b32 v8, s68\nv_mov_b32 v9, 1\ns_waitcnt lgkmcnt(0)\nds_write_b32 v8, v9\ns_waitcnt lgkmcnt(0)')
    a.label('L_conv_n')
    a('s_cmp_lt_u32 s72, 8\ns_cbranch_scc1 L_conv')
    a('s_waitcnt lgkmcnt(0)')
    a.stamp(7); a.stamp(13)
    a('v_bfe_u32 v5, v0, 4, 1\nv_lshlrev_b32 v5, 15, v5\nv_bfe_u32 v6, v0, 1, 3\nv_lshl_add_u32 v5, v6, 12, v5')
    a(f'v_and_b32 v6, 1, v0\nv_lshrrev_b32 v11, 5, v0\nv_lshl_add_u32 v6, v6, 1, v11\ns_bfe_u32 s68, s{sJ}, 0x20001\nv_xor_b32 v6, s68, v6\nv_lshl_add_u32 v5, v6, 4, v5')
    a(f's_lshl_b32 s68, s{sG}, 18\ns_and_b32 s69, s{sCH}, 63\ns_lshl_b32 s69, s69, 6\ns_add_u32 s68, s68, s69\ns_add_u32 s68, s68, {WS_YT}')
    for tp in range(4):
        o = 64 + 4*tp; c0 = CA + 8*tp
        for i in range(4): a(f'v_cvt_pk_bf16_f32 v{o+i}, v{c0+2*i}, v{c0+2*i+1}')
        a(f'v_permlane16_swap_b32 v{o}, v{o+2}\nv_permlane16_swap_b32 v{o+1}, v{o+3}')
        a(f'buffer_store_dwordx4 {vr(o,4)}, v5, {srd(SWS)}, s68 offen sc1\ns_add_u32 s68, s68, 65536')
    a(f's_add_u32 s68, s{sJ}, s{sWV}\ns_add_u32 s68, s68, 12\ns_and_b32 s68, s68, 15\ns_lshl_b32 s68, s68, 17')
    for p in range(8):
        wo_piece(0, 's68', f's{sTB}', 1024*p); a('s_add_u32 s68, s68, 16384')
    a('s_waitcnt vmcnt(8)')
    a.arrive(3, sG, 73, 10, 11)
    a.stamp(8)
    a('s_waitcnt vmcnt(0)\nds_write_b32 v8, v9 offset:16')
    a.await_(3, sG, 73, 10, 11)
    a.stamp(9)
    a(f's_lshl_b32 s68, s81, 10\ns_add_u32 s68, s68, {WS_YT}\ns_mov_b32 m0, s{sUB}')
    for p in range(4): a(f'buffer_load_dwordx4 v15, {srd(SWS)}, s68 offen offset:{1024*p} sc1 lds')
    a('v_and_b32 v5, 3, v0\nv_lshrrev_b32 v6, 5, v0\nv_lshl_add_u32 v6, v6, 2, v5\nv_lshlrev_b32 v6, 9, v6\nv_bfe_u32 v11, v0, 2, 2\nv_lshl_add_u32 v6, v11, 6, v6')
    a(f'v_lshl_add_u32 v6, v5, 4, v6\nv_bfe_u32 v12, v0, 4, 1\nv_lshl_add_u32 v6, v12, 3, v6\nv_add_u32 v20, s{sUB}, v6')
    for i in range(1, 4): a(f'v_xor_b32 v{20+i}, {16*i}, v20')
    a('v_lshl_add_u32 v5, v12, 2, v5\nv_lshlrev_b32 v5, 12, v5\nv_lshrrev_b32 v6, 5, v0\nv_lshl_add_u32 v6, v6, 2, v11\nv_lshl_add_u32 v5, v6, 4, v5')
    a(f's_lshl_b32 s68, s{sJ}, 19\ns_lshl_b32 s69, s{sWV}, 17\ns_add_u32 s68, s68, s69\ns_lshl_b32 s69, s{sG}, 7\ns_add_u32 s68, s68, s69\ns_add_u32 s68, s68, 2048')
    a('s_waitcnt vmcnt(0)')
    for i in range(4):
        for r2 in range(2): a(f'ds_read_b64_tr_b16 {vr(32+4*i+2*r2,2)}, v{20+i} offset:{256*r2}')
    for i in range(4):
        a(f's_waitcnt lgkmcnt({6-2*i})\nbuffer_store_dwordx4 {vr(32+4*i,4)}, v5, {srd(SOUT)}, s68 offen\ns_add_u32 s68, s68, 32768')
    if a.stamps:
        a('s_waitcnt vmcnt(0)'); a.stamp(10); a.dump_stamps(1)
    a.label('L_end')
    a('s_endpgm')

HEADER = open('concat_heads__linear_attn_block__ssm_conv_s4__prompt.s.ref').read().split('; Override')[0].rstrip('\n').split('\n') if True else []
def build(stamps=False, code_bytes=16384, verbose=False, opts=()):
    a = K(stamps, opts)
    prologue(a, code_bytes); g_path(a); s_path(a)
    body = hazard.fix(a.text(), verbose)
    return file_text(HEADER + ['; @launch grid=(256,1,1) block=(512,1,1) lds=163840'], [(NAME, body + '\n', kernel_desc(NAME, 256, 102, 256))])
def text_size(src):
    import subprocess, tempfile, os, re
    d = tempfile.mkdtemp(); open(d + '/a.s', 'w').write(src)
    subprocess.run(['clang', '-x', 'assembler', '-target', 'amdgcn-amd-amdhsa', '-mcpu=gfx950', '-c', d + '/a.s', '-o', d + '/a.o'], check=True)
    o = subprocess.run(['llvm-readelf', '-S', d + '/a.o'], capture_output=True, text=True).stdout
    return int(re.search(r'\.text\s+PROGBITS\s+\S+\s+\S+\s+(\S+)', o).group(1), 16)
if __name__ == '__main__':
    out = sys.argv[1]; stamps = 'stamps' in sys.argv
    n = text_size(build(stamps, opts=sys.argv[2:]))
    print('code bytes', n)
    open(out, 'w').write(build(stamps, code_bytes=n, verbose='-v' in sys.argv, opts=sys.argv[2:]))
```

```python
import sys, struct
from asmgen import *
import hazard

NAME = 'concat_heads__linear_attn_block__ssm_conv_s4__prompt_kernel'
def f2u(x): return struct.unpack('<I', struct.pack('<f', x))[0]
LOG2E = 1.4426950408889634
EPS = 1e-6

WS_KVFLAG, WS_OFLAG, WS_UFLAG, WS_YFLAG = 0, 4096, 8192, 12288
WS_ZP  = 65536
WS_KVP = 1 << 20
WS_O   = 4 << 20
WS_UT  = 8 << 20
WS_YT  = 12 << 20
WS_SIZE = 16 << 20
WS_STAMP = 16 << 20
SLOT = 40960
L_TAB = 40960; TABSZ = 8704
L_GS = 133120
L_U = 145408; USZ = 4608
L_FLG = L_U
L_FLW = L_U + USZ
L_SYN = L_U + 2*USZ
def wo_blk(b):
    if b < 7: return 75776 + 8192*b
    if b < 12: return 8192*(b-7)
    return L_TAB + TABSZ*(b-12)
SPIN = 400000

SX, SW, SWO, SU, SWS, SOUT = 36, 40, 44, 48, 52, 56
sXCD, sI, sCB, sRB, sG, sJ, sWV, sROT = 60, 61, 62, 63, 64, 65, 66, 67
def srd(n): return f's[{n}:{n+3}]'
def vr(a, n): return f'v[{a}:{a+n-1}]'

class K(Asm):
    def __init__(self, stamps=False, opts=()):
        super().__init__()
        self.stamps = stamps; self.opts = set(opts)
    def cstamp(self, idx):
        if not self.stamps: return
        self(f's_memtime s[98:99]\ns_waitcnt lgkmcnt(0)\ns_mov_b32 s{82+idx}, s98')
    def stamp(self, idx):
        if not self.stamps: return
        self(f's_memrealtime s[98:99]\ns_waitcnt lgkmcnt(0)\ns_mov_b32 s{82+idx}, s98')
    def dump_stamps(self, role):
        if not self.stamps: return
        a = self
        for o in a.opts:
            if o.startswith('probe' + 'GS'[role]):
                L = a.newlabel('probe'); a.label(L)
                a(f's_sleep 2\ns_memrealtime s[98:99]\ns_waitcnt lgkmcnt(0)\ns_sub_u32 s68, s98, s{82+int(o[6:])}\ns_cmp_lt_u32 s68, 5000\ns_cbranch_scc1 {L}')
        a(f's_lshl_b32 s68, s2, 3\ns_add_u32 s68, s68, s{sWV}\ns_add_u32 s68, s68, {4*role}\ns_lshl_b32 s68, s68, 6\ns_add_u32 s68, s68, {WS_STAMP}')
        a('v_mov_b32 v0, s68')
        for i in range(16): a(f'v_mov_b32 v{4+i}, s{82+i}')
        a('s_mov_b64 exec, 1')
        for i in range(4): a(f'global_store_dwordx4 v0, {vr(4+4*i,4)}, s[32:33] offset:{16*i}')
        a('s_mov_b64 exec, -1')
    def poll_global(self, vt, voff, soff, srd_=SWS, first_issued=False):
        a = self; L = a.newlabel('poll'); D = a.newlabel('polld')
        a(f's_mov_b32 s69, {SPIN}')
        if first_issued:
            a(f'v_cmp_ne_u32 vcc, 0, v{vt}\ns_cmp_eq_u64 vcc, -1\ns_cbranch_scc1 {D}')
        a.label(L)
        if srd_ == 'dbg': a(f'global_load_dword v{vt}, v{voff}, s[30:31] sc1')
        else: a(f'buffer_load_dword v{vt}, v{voff}, {srd(srd_)}, {soff} offen sc1')
        a(f's_waitcnt vmcnt(0)\nv_cmp_ne_u32 vcc, 0, v{vt}\ns_cmp_eq_u64 vcc, -1\ns_cbranch_scc1 {D}')
        a(f's_sub_u32 s69, s69, 1\ns_cmp_lg_u32 s69, 0\ns_cbranch_scc1 {L}')
        a.label(D)
    def arrive(self, idx, sgrp, slast, va, vt):
        a = self; N = a.newlabel('notlast')
        a(f'v_mov_b32 v{va}, {L_SYN + 8*idx}\nv_mov_b32 v{vt}, 1\ns_mov_b64 exec, 1\nds_add_rtn_u32 v{vt}, v{va}, v{vt}')
        a(f's_lshl_b32 s68, s{sgrp}, 8\ns_add_u32 s68, s68, {4096*idx}\ns_waitcnt lgkmcnt(0)\nv_readfirstlane_b32 s{slast}, v{vt}\nv_mov_b32 v{vt}, 1\nv_mov_b32 v{va}, 0\ns_nop 1')
        a(f's_cmp_eq_u32 s{slast}, 3\ns_cbranch_scc0 {N}\nbuffer_atomic_add v{vt}, v{va}, {srd(SWS)}, s68 offen sc1')
        a.label(N)
        a('s_mov_b64 exec, -1')
    def await_(self, idx, sgrp, slast, va, vt):
        a = self; N = a.newlabel('follow'); L = a.newlabel('gp'); D = a.newlabel('gpd'); E = a.newlabel('gpe')
        a(f's_cmp_eq_u32 s{slast}, 3\ns_cbranch_scc0 {N}')
        a(f's_lshl_b32 s68, s{sgrp}, 8\ns_add_u32 s68, s68, {4096*idx}\nv_mov_b32 v{va}, 0\ns_mov_b32 s69, {SPIN}\ns_mov_b64 exec, 1')
        a.label(L)
        a(f'buffer_load_dword v{vt}, v{va}, {srd(SWS)}, s68 offen sc1\ns_waitcnt vmcnt(0)\nv_cmp_eq_u32 vcc, 16, v{vt}\ns_cbranch_vccnz {D}')
        if 'gsleep' in a.opts: a('s_sleep 4')
        a(f's_sub_u32 s69, s69, 1\ns_cmp_lg_u32 s69, 0\ns_cbranch_scc1 {L}')
        a.label(D)
        a(f'v_mov_b32 v{va}, {L_SYN + 8*idx + 4}\nv_mov_b32 v{vt}, 1\nds_write_b32 v{va}, v{vt}\ns_mov_b64 exec, -1\ns_branch {E}')
        a.label(N)
        a(f'v_mov_b32 v{va}, {L_SYN + 8*idx + 4}')
        a.poll_lds(vt, va)
        a.label(E)
    def poll_lds(self, vt, vaddr):
        a = self; L = a.newlabel('lpoll'); D = a.newlabel('lpolld')
        a(f's_mov_b32 s69, {SPIN*8}')
        a.label(L)
        a(f'ds_read_b32 v{vt}, v{vaddr}\ns_waitcnt lgkmcnt(0)\nv_cmp_ne_u32 vcc, 0, v{vt}\ns_cmp_eq_u64 vcc, -1\ns_cbranch_scc1 {D}')
        a(f's_sub_u32 s69, s69, 1\ns_cmp_lg_u32 s69, 0\ns_cbranch_scc1 {L}')
        a.label(D)

def prologue(a, code_bytes):
    a.stamp(0)
    a('s_cmp_ge_u32 s2, 256\ns_cbranch_scc1 L_end')
    a('s_load_dwordx16 s[4:19], s[0:1], 0\ns_load_dwordx8 s[20:27], s[0:1], 64\ns_load_dwordx4 s[28:31], s[0:1], 96\ns_load_dwordx2 s[32:33], s[0:1], 112')
    a(f's_and_b32 s{sXCD}, s2, 7\ns_lshr_b32 s{sI}, s2, 3')
    a('v_lshrrev_b32 v1, 6, v0\nv_and_b32 v0, 63, v0\ns_getpc_b64 s[34:35]')
    a(f'v_readfirstlane_b32 s{sWV}, v1\ns_nop 3')
    nl = (code_bytes + 4095) // 4096
    a(f's_cmp_lg_u32 s{sWV}, 0\ns_cbranch_scc1 L_nopf')
    a(f'v_min_u32 v2, {nl-1}, v0\nv_lshlrev_b32 v2, 5, v2\nv_add_u32 v2, s{sI}, v2\nv_lshlrev_b32 v2, 7, v2\nv_min_u32 v2, {code_bytes-256}, v2')
    a('global_load_dword v250, v2, s[34:35]')
    a.label('L_nopf')
    a(f's_and_b32 s68, s{sXCD}, 3\ns_lshl_b32 s68, s68, 2\ns_and_b32 s69, s{sI}, 3\ns_add_u32 s{sCB}, s68, s69')
    a(f's_lshr_b32 s68, s{sXCD}, 2\ns_lshl_b32 s68, s68, 3\ns_lshr_b32 s70, s{sI}, 2\ns_add_u32 s{sRB}, s68, s70')
    a(f's_add_u32 s{sROT}, s69, s70')
    a(f's_lshl_b32 s68, s{sXCD}, 1\ns_lshr_b32 s69, s{sI}, 4\ns_add_u32 s{sG}, s68, s69\ns_and_b32 s{sJ}, s{sI}, 15')
    for n, sz in ((SX, 4<<20), (SW, 6<<20), (SWO, 2<<20), (SU, 4<<20), (SWS, WS_SIZE), (SOUT, 8<<20)):
        a(f's_mov_b32 s{n+2}, {sz}\ns_mov_b32 s{n+3}, 0x20000')
    a('s_waitcnt lgkmcnt(0)')
    for n, p in ((SX, 4), (SW, 6), (SWO, 8), (SU, 10), (SWS, 32), (SOUT, 28)):
        a(f's_mov_b32 s{n}, s{p}\ns_mov_b32 s{n+1}, s{p+1}')
    a(f's_cmp_ge_u32 s{sWV}, 4\ns_cbranch_scc1 L_S')

AQ, AK, AV = 16, 48, 80
FS = (112, 132)
def g_path(a):
    sRH, sHH, sHEAD, sSLOT, sCNT = 73, 74, 75, 76, 77
    a('s_setprio 2')
    a(f's_and_b32 s{sRH}, s{sWV}, 1\ns_lshr_b32 s{sHH}, s{sWV}, 1\ns_lshl_b32 s{sHEAD}, s{sCB}, 1\ns_add_u32 s{sHEAD}, s{sHEAD}, s{sHH}')
    a('v_lshlrev_b32 v15, 4, v0')
    a('v_mov_b32 v8, 0\nv_mov_b32 v9, 0\nv_mov_b32 v10, 0\nv_mov_b32 v11, 0')
    a('s_cmp_lg_u32 s2, 0\ns_cbranch_scc1 L_nozero')
    a(f's_lshl_b32 s68, s{sWV}, 12')
    for i in range(4): a(f'buffer_store_dwordx4 v[8:11], v15, {srd(SWS)}, s68 offen offset:{1024*i} sc1')
    a(f's_lshl_b32 s68, s{sWV}, 2\nv_mov_b32 v2, s68\nv_mov_b32 v3, 1\ns_waitcnt vmcnt(0)\ns_mov_b64 exec, 1')
    a('global_store_dword v2, v3, s[30:31] sc1\ns_mov_b64 exec, -1')
    a.label('L_nozero')
    a(f's_mul_i32 s68, s{sWV}, {USZ}\ns_add_u32 s68, s68, {L_U}\nv_lshlrev_b32 v2, 3, v0\nv_add_u32 v2, s68, v2\nds_write_b64 v2, v[8:9]')
    a('v_and_b32 v2, 31, v0\nv_lshrrev_b32 v3, 5, v0\nv_bfe_u32 v4, v0, 1, 3\nv_xor_b32 v4, v4, v3\nv_lshlrev_b32 v4, 4, v4\nv_lshl_add_u32 v4, v2, 7, v4')
    a(f's_lshl_b32 s68, s{sRH}, 13\nv_add_u32 v12, s68, v4')
    a('v_bfe_u32 v4, v0, 2, 2\nv_lshl_add_u32 v5, v3, 3, v4\nv_lshlrev_b32 v5, 7, v5')
    a('v_bfe_u32 v6, v0, 4, 1\nv_and_b32 v7, 3, v0\nv_lshlrev_b32 v7, 3, v7\nv_lshl_add_u32 v6, v6, 5, v7')
    a(f's_lshl_b32 s68, s{sHH}, 6\nv_add_u32 v6, s68, v6\nv_bfe_u32 v7, v0, 3, 1\nv_lshlrev_b32 v7, 6, v7\nv_xor_b32 v6, v6, v7')
    a('v_add_u32 v5, v5, v6\nv_add_u32 v13, 16384, v5')
    VX = (2, 3, 4, 5); VW = 6
    def setaddr(first=False):
        o = []
        o.append(f'v_add_u32 v{VX[0]}, s{sSLOT}, v12')
        o.append(f'v_add_u32 v{VW}, s{sSLOT}, v13')
        for k in (1, 2, 3): o.append(f'v_xor_b32 v{VX[k]}, {k<<5}, v{VX[0]}')
        return o
    a(f's_mov_b32 s{sSLOT}, 0\ns_mov_b32 s{sCNT}, 0')
    for l in setaddr(): a(l)
    a(f's_mov_b32 s72, {f2u(EPS)}\ns_mov_b32 s70, {f2u(LOG2E)}\ns_mov_b32 s71, {f2u(LOG2E)}')
    for r in range(AQ, AV): a(f'v_mov_b32 v{r}, s72')
    for r in range(AV, AV+32): a(f'v_mov_b32 v{r}, 0')
    def reads(ks):
        f = FS[ks & 1]
        w = lambda seg, r2: f'ds_read_b64_tr_b16 {vr(f+8+4*seg+2*r2, 2)}, v{VW} offset:{seg*8192+ks*2048+r2*512}'
        x = lambda mt: f'ds_read_b128 {vr(f+4*mt, 4)}, v{VX[ks]} offset:{4096*mt}'
        return [x(0), w(1,0), w(1,1), x(1), w(2,0), w(2,1), w(0,0), w(0,1)]
    def mfmas(ks):
        f = FS[ks & 1]
        X = lambda mt: vr(f+4*mt, 4); W = lambda seg: vr(f+8+4*seg, 4)
        mm = lambda d, x, y: f'v_mfma_f32_32x32x16_bf16 {vr(d,16)}, {x}, {y}, {vr(d,16)}'
        return [mm(AK, X(0), W(1)), mm(AK+16, X(1), W(1)), mm(AV, X(0), W(2)), mm(AV+16, X(1), W(2)), mm(AQ, W(0), X(0)), mm(AQ+16, W(0), X(1))]
    def group(ks, rd, extra=()):
        m = mfmas(ks); rd = list(rd); extra = list(extra)
        plan = [3, 3, 2, 0, 0, 0]
        for i in range(6):
            a(m[i])
            for _ in range(plan[i]):
                if rd: a(rd.pop(0))
            if i >= 3:
                for _ in range(4):
                    if extra: a(extra.pop(0))
    a('s_waitcnt lgkmcnt(0)\ns_barrier')
    a.stamp(1); a.cstamp(11)
    for l in reads(0): a(l)
    a('.p2align 3')
    a.label('L_p1')
    a('s_waitcnt lgkmcnt(0)\ns_nop 0'); group(0, reads(1))
    a('s_waitcnt lgkmcnt(0)\ns_nop 0'); group(1, reads(2))
    a('s_waitcnt lgkmcnt(0)\ns_nop 0')
    ex = [f's_add_u32 s{sSLOT}, s{sSLOT}, {SLOT}', f's_cmp_eq_u32 s{sSLOT}, {3*SLOT}', f's_cselect_b32 s{sSLOT}, 0, s{sSLOT}', f's_add_u32 s{sCNT}, s{sCNT}, 1'] + setaddr() + [f's_cmp_eq_u32 s{sCNT}, 16']
    group(2, reads(3), ex)
    a('s_waitcnt lgkmcnt(0)\ns_cbranch_scc1 L_p1_tail\ns_barrier')
    group(3, reads(0))
    a('s_branch L_p1')
    a.label('L_p1_tail')
    group(3, [])
    a.stamp(2); a.cstamp(12)
    T, ONES, KV, Z, CE = 152, 156, 160, 176, 192
    a(f'v_and_b32 v2, 3, v0\nv_lshlrev_b32 v2, 2, v2\nglobal_load_dword v14, v2, s[30:31] sc1')
    a(f'v_mov_b32 v{CE}, {f2u(-EPS*LOG2E)}\nv_mov_b32 v{CE+1}, {f2u(-EPS*LOG2E)}')
    for i in range(4): a(f'v_mov_b32 v{ONES+i}, 0x3f803f80')
    def phi(acc, dst):
        for u in range(8):
            x = acc + 2*u; t = T + 2*(u & 1)
            a(f'v_pk_fma_f32 {vr(t,2)}, {vr(x,2)}, s[70:71], {vr(CE,2)}')
            a(f'v_exp_f32 v{t}, v{t} clamp\nv_exp_f32 v{t+1}, v{t+1} clamp')
            a(f'v_max_f32 v{x}, s72, v{x}\nv_max_f32 v{x+1}, s72, v{x+1}')
            a(f'v_pk_add_f32 {vr(t,2)}, {vr(t,2)}, {vr(x,2)}')
            a(f'v_cvt_pk_bf16_f32 v{dst+u}, v{t}, v{t+1}')
    def pack(acc, dst, n=8):
        for u in range(n): a(f'v_cvt_pk_bf16_f32 v{dst+u}, v{acc+2*u}, v{acc+2*u+1}')
    for mt in range(2):
        pk, pv = FS[mt], FS[mt] + 8
        phi(AK + 16*mt, pk); pack(AV + 16*mt, pv)
        for h in range(2):
            c = '0' if (mt == 0 and h == 0) else None
            a(f'v_mfma_f32_32x32x16_bf16 {vr(KV,16)}, {vr(pk+4*h,4)}, {vr(pv+4*h,4)}, {c or vr(KV,16)}')
        for h in range(2):
            c = '0' if (mt == 0 and h == 0) else None
            a(f'v_mfma_f32_32x32x16_bf16 {vr(Z,16)}, {vr(pk+4*h,4)}, {vr(ONES,4)}, {c or vr(Z,16)}')
    a(f's_lshl_b32 s68, s{sWV}, 11\ns_add_u32 s68, s68, {L_GS}\nv_add_u32 v2, s68, v15\nv_xor_b32 v3, 2048, v2' if (L_GS // 2048) % 2 == 0 else
      f's_lshl_b32 s68, s{sWV}, 11\ns_add_u32 s69, s68, {L_GS}\nv_add_u32 v2, s69, v15\ns_xor_b32 s68, s68, 2048\ns_add_u32 s68, s68, {L_GS}\nv_add_u32 v3, s68, v15')
    a(f's_lshl_b32 s68, s{sWV}, 2\ns_add_u32 s69, s68, {L_FLG}\nv_mov_b32 v4, s69\ns_xor_b32 s68, s68, 4\ns_add_u32 s68, s68, {L_FLG}\nv_mov_b32 v5, s68\nv_mov_b32 v6, 1')
    a(f's_cmp_eq_u32 s{sRH}, 0\ns_nop 2\ns_cbranch_scc1 L_noswap')
    for i in range(8): a(f'v_swap_b32 v{KV+i}, v{KV+8+i}')
    a.label('L_noswap')
    a(f'ds_write_b128 v2, {vr(KV+8,4)}\nds_write_b128 v2, {vr(KV+12,4)} offset:1024\nds_write_b32 v4, v6')
    pack(Z, 112)
    a('v_and_b32 v7, 1, v0\nv_cmp_eq_u32 vcc, 1, v7\nv_lshrrev_b32 v8, 5, v0\nv_lshl_add_u32 v7, v8, 1, v7\nv_lshlrev_b32 v7, 4, v7')
    for i in range(4): a(f'v_cndmask_b32 v{112+i}, v{112+i}, v{116+i}, vcc')
    a(f's_lshl_b32 s68, s{sHEAD}, 5\ns_lshl_b32 s69, s{sRB}, 1\ns_add_u32 s69, s69, s{sRH}\ns_add_u32 s78, s68, s69')
    a(f's_lshl_b32 s68, s78, 6\ns_add_u32 s68, s68, {WS_ZP}\ns_mov_b32 exec_lo, 3\ns_mov_b32 exec_hi, 3')
    a(f'buffer_store_dwordx4 v[112:115], v7, {srd(SWS)}, s68 offen sc1\ns_mov_b64 exec, -1')
    a.poll_lds(8, 5)
    a(f'ds_read_b128 {vr(KV+8,4)}, v3\nds_read_b128 {vr(KV+12,4)}, v3 offset:1024')
    a(f's_lshl_b32 s68, s{sHEAD}, 1\ns_add_u32 s68, s68, s{sRH}\ns_lshl_b32 s79, s68, 14\ns_add_u32 s79, s79, {WS_KVP}')
    a(f's_lshl_b32 s68, s{sRB}, 10\ns_add_u32 s68, s68, s79\ns_waitcnt lgkmcnt(0)')
    for i in range(4): a(f'v_pk_add_f32 {vr(KV+2*i,2)}, {vr(KV+2*i,2)}, {vr(KV+8+2*i,2)}')
    pack(KV, 116, 4)
    a(f'buffer_store_dwordx4 v[116:119], v15, {srd(SWS)}, s68 offen sc1')
    a.stamp(3)
    PQ = 48
    phi(AQ, PQ); phi(AQ + 16, PQ + 8)
    SEL = 64
    a('v_and_b32 v7, 31, v0\nv_lshrrev_b32 v8, 5, v0\nv_lshlrev_b32 v8, 2, v8\nv_sub_u32 v7, v7, v8')
    a('v_mov_b32 v9, 0x3f80\nv_mov_b32 v10, 0x3f800000')
    for u in range(4):
        m0 = 8*(u >> 1) + 2*(u & 1)
        a(f'v_cmp_eq_u32 vcc, {m0}, v7\nv_cmp_eq_u32 s[80:81], {m0+1}, v7\nv_cndmask_b32 v{SEL+u}, 0, v9, vcc\nv_cndmask_b32 v{SEL+u}, v{SEL+u}, v10, s[80:81]')
    a('s_waitcnt vmcnt(0)')
    a('v_and_b32 v2, 3, v0\nv_lshlrev_b32 v2, 2, v2')
    a.poll_global(14, 2, None, 'dbg', first_issued=True)
    a.arrive(0, sCB, 77, 2, 14)
    a.stamp(4)
    a.await_(0, sCB, 77, 2, 14)
    a.stamp(5)
    ZA, PB, SUM = 68, 80, 160
    a(f'v_and_b32 v2, 31, v0\nv_lshlrev_b32 v2, 6, v2\nv_lshrrev_b32 v3, 5, v0\nv_lshl_add_u32 v2, v3, 5, v2\ns_lshl_b32 s68, s{sHEAD}, 11\ns_add_u32 s68, s68, {WS_ZP}')
    a(f'buffer_load_dwordx4 {vr(ZA,4)}, v2, {srd(SWS)}, s68 offen sc1\nbuffer_load_dwordx4 {vr(ZA+4,4)}, v2, {srd(SWS)}, s68 offen offset:16 sc1')
    a(f's_lshl_b32 s69, s{sRB}, 11')
    for p in range(8):
        a(f's_and_b32 s69, s69, 0x3fff\ns_add_u32 s68, s69, s79')
        a(f'buffer_load_dwordx4 {vr(PB+8*p,4)}, v15, {srd(SWS)}, s68 offen sc1\nbuffer_load_dwordx4 {vr(PB+8*p+4,4)}, v15, {srd(SWS)}, s68 offen offset:1024 sc1')
        a('s_add_u32 s69, s69, 2048')
    DEN = (176, 192); NUM = (16, 32)
    a('s_waitcnt vmcnt(16)')
    for mt in range(2):
        a(f'v_mfma_f32_32x32x16_bf16 {vr(DEN[mt],16)}, {vr(ZA,4)}, {vr(PQ+8*mt,4)}, 0')
        a(f'v_mfma_f32_32x32x16_bf16 {vr(DEN[mt],16)}, {vr(ZA+4,4)}, {vr(PQ+8*mt+4,4)}, {vr(DEN[mt],16)}')
    for p in range(16):
        a(f's_waitcnt vmcnt({15-p})')
        a(f'v_mfma_f32_32x32x16_bf16 {vr(SUM,16)}, {vr(SEL,4)}, {vr(PB+4*p,4)}, {"0" if p == 0 else vr(SUM,16)}')
    for mt in range(2):
        d = DEN[mt]
        for i in range(4): a(f'v_pk_add_f32 {vr(d+2*i,2)}, {vr(d+2*i,2)}, {vr(d+8+2*i,2)}')
        for i in range(2): a(f'v_pk_add_f32 {vr(d+2*i,2)}, {vr(d+2*i,2)}, {vr(d+4+2*i,2)}')
        a(f'v_pk_add_f32 {vr(d,2)}, {vr(d,2)}, {vr(d+2,2)}\nv_add_f32 v{d}, v{d}, v{d+1}')
    pack(SUM, 112, 4)
    a(f's_lshl_b32 s68, s{sWV}, 10\ns_add_u32 s68, s68, {L_GS+8192}\nv_add_u32 v2, s68, v15\nds_write_b128 v2, v[112:115]\nds_write_b32 v4, v6 offset:16')
    a(f's_lshl_b32 s68, s{sHH}, 11\ns_add_u32 s68, s68, {L_GS+8192}\nv_add_u32 v3, s68, v15\nv_add_u32 v5, 16, v5')
    a(f'v_permlane32_swap_b32 v{DEN[0]}, v{DEN[1]}\nv_add_f32 v7, v{DEN[0]}, v{DEN[1]}\nv_add_f32 v7, s72, v7\nv_rcp_f32 v7, v7')
    a('v_mov_b32 v8, v7\nv_mov_b32 v10, v7\nv_permlane32_swap_b32 v8, v10')
    a.poll_lds(9, 5)
    a('ds_read_b128 v[116:119], v3\nds_read_b128 v[120:123], v3 offset:1024\ns_waitcnt lgkmcnt(0)')
    for mt in range(2):
        a(f'v_mfma_f32_32x32x16_bf16 {vr(NUM[mt],16)}, v[116:119], {vr(PQ+8*mt,4)}, 0')
        a(f'v_mfma_f32_32x32x16_bf16 {vr(NUM[mt],16)}, v[120:123], {vr(PQ+8*mt+4,4)}, {vr(NUM[mt],16)}')
    a(f's_lshl_b32 s68, s{sRB}, 1\ns_add_u32 s68, s68, s{sRH}\ns_lshl_b32 s80, s68, 17\ns_lshl_b32 s69, s{sHEAD}, 11\ns_add_u32 s80, s80, s69\ns_add_u32 s80, s80, {WS_O}')
    for mt in range(2):
        n = NUM[mt]; r = (8, 10)[mt]; o = 124 + 8*mt
        for u in range(8):
            a(f'v_pk_mul_f32 {vr(n+2*u,2)}, {vr(n+2*u,2)}, {vr(r,2)} op_sel_hi:[1,0]')
            a(f'v_cvt_pk_bf16_f32 v{o+u}, v{n+2*u}, v{n+2*u+1}')
            if u & 3 == 3: a(f'buffer_store_dwordx4 {vr(o+u-3,4)}, v15, {srd(SWS)}, s80 offen offset:{1024*(u>>2)} sc1')
        if mt == 0: a('s_add_u32 s80, s80, 65536')
    a.stamp(6)
    VB = (2, 3, 12)
    a('v_lshrrev_b32 v3, 5, v0\nv_bfe_u32 v7, v0, 2, 2\nv_lshl_add_u32 v7, v3, 2, v7\nv_lshlrev_b32 v7, 7, v7')
    a('v_bfe_u32 v8, v0, 4, 1\nv_and_b32 v9, 1, v0\nv_lshl_add_u32 v8, v8, 1, v9\nv_bfe_u32 v9, v0, 1, 1\nv_lshl_add_u32 v8, v8, 1, v9\nv_lshlrev_b32 v8, 3, v8')
    a('v_bfe_u32 v9, v0, 3, 1\nv_lshl_add_u32 v8, v9, 6, v8\nv_add_u32 v2, v7, v8')
    a('v_add_u32 v3, 0x10000, v2\nv_add_u32 v12, 0x20000, v2\nv_xor_b32 v7, 64, v2\nv_xor_b32 v8, 64, v3\nv_xor_b32 v13, 64, v12')
    VB = ((2, 7), (3, 8), (12, 13))
    a(f'v_and_b32 v9, 3, v0\nv_lshlrev_b32 v9, 2, v9\nv_add_u32 v9, {L_FLW}, v9')
    a('s_waitcnt vmcnt(0)')
    a.arrive(1, sRB, 77, 10, 14)
    a.stamp(7)
    a.await_(1, sG, 77, 10, 14)
    a.stamp(13)
    a.poll_lds(14, 9)
    a.stamp(8)
    ACC, AR, BF = (16, 32), 48, (80, 88)
    a(f's_lshl_b32 s78, s{sG}, 2\ns_add_u32 s78, s78, s{sWV}\ns_lshl_b32 s79, s78, 16\ns_add_u32 s79, s79, {WS_O}\ns_lshl_b32 s80, s{sJ}, 12')
    def aload(i):
        o = []
        if i % 4 == 0: o.append(f's_add_u32 s81, s80, s79\ns_add_u32 s80, s80, 4096\ns_and_b32 s80, s80, 0xffff')
        o.append(f'buffer_load_dwordx4 {vr(AR+4*(i%8),4)}, v15, {srd(SWS)}, s81 offen offset:{1024*(i%4)} sc1')
        return o
    def bread(i):
        o = []
        for t in range(2):
            for r2 in range(2):
                off = wo_blk(i >> 2) + (i & 3)*2048 + r2*1024
                o.append(f'ds_read_b64_tr_b16 {vr(BF[i&1]+4*t+2*r2,2)}, v{VB[off>>16][t]} offset:{off & 0xffff}')
        return o
    for i in range(7):
        for l in aload(i): a(l)
    for l in bread(0): a(l)
    for i in range(64):
        if i == 47:
            a('v_add_u32 v9, 16, v9'); a.poll_lds(14, 9)
        a(f's_waitcnt vmcnt({min(6, 63-i)}) lgkmcnt(0)')
        rd = bread(i+1) if i < 63 else []
        for t in range(2):
            a(f'v_mfma_f32_32x32x16_bf16 {vr(ACC[t],16)}, {vr(BF[i&1]+4*t,4)}, {vr(AR+4*(i%8),4)}, {"0" if i == 0 else vr(ACC[t],16)}')
            if t == 0:
                for l in rd: a(l)
            elif i + 7 < 64:
                for l in aload(i+7): a(l)
    a.stamp(9)
    a(f'v_and_b32 v2, 15, v0\nv_lshlrev_b32 v2, 12, v2\nv_bfe_u32 v3, v0, 4, 1\nv_lshl_add_u32 v2, v3, 5, v2\nv_lshrrev_b32 v3, 5, v0\nv_lshl_add_u32 v2, v3, 4, v2')
    a(f's_lshl_b32 s68, s78, 17\ns_lshl_b32 s69, s{sJ}, 7\ns_add_u32 s68, s68, s69\ns_add_u32 s69, s68, 65536')
    for t in range(2):
        o = 48 + 8*t
        pack(ACC[t], o)
        for i in range(4): a(f'v_permlane16_swap_b32 v{o+i}, v{o+4+i}')
        a(f'buffer_store_dwordx4 {vr(o,4)}, v2, {srd(SOUT)}, s68 offen offset:{64*t}')
        a(f'buffer_store_dwordx4 {vr(o+4,4)}, v2, {srd(SOUT)}, s69 offen offset:{64*t}')
    if a.stamps:
        a('s_waitcnt vmcnt(0)'); a.stamp(10); a.dump_stamps(0)
    a('s_endpgm')

def s_path(a):
    sSLOT, sCNT, sXO, sWOF, sM, sCH, sUB, sTB = 73, 74, 75, 76, 77, 78, 79, 80
    a.label('L_S')
    a(f's_sub_u32 s{sWV}, s{sWV}, 4')
    a('v_lshrrev_b32 v3, 3, v0\nv_and_b32 v4, 7, v0')
    a(f's_lshl_b32 s68, s{sRB}, 7\ns_lshl_b32 s69, s{sWV}, 5\ns_add_u32 s68, s68, s69\nv_add_u32 v5, s68, v3\nv_lshlrev_b32 v5, 11, v5')
    a('v_lshrrev_b32 v6, 4, v0\nv_xor_b32 v6, v6, v4\nv_lshl_add_u32 v10, v6, 4, v5\nv_xor_b32 v11, 64, v10\nv_add_u32 v11, 16384, v11\nv_add_u32 v12, 32768, v10\nv_add_u32 v13, 32768, v11')
    a(f's_lshl_b32 s69, s{sWV}, 4\nv_add_u32 v5, s69, v3\nv_mul_u32_u24 v5, 6144, v5\nv_bfe_u32 v6, v0, 4, 1\nv_lshlrev_b32 v6, 2, v6\nv_xor_b32 v16, v6, v4')
    a(f'v_lshl_add_u32 v5, v16, 4, v5\ns_lshl_b32 s68, s{sCB}, 7\nv_add_u32 v14, s68, v5\nv_add_u32 v15, {8*6144}, v14')
    a(f's_mov_b32 s{sSLOT}, 0\ns_mov_b32 s{sCNT}, 0\ns_lshl_b32 s81, s{sXCD}, 1')
    def issue():
        a(f's_add_u32 s68, s{sCNT}, s{sROT}\ns_and_b32 s68, s68, 3\ns_and_b32 s69, s{sCNT}, 12\ns_add_u32 s68, s68, s69\ns_add_u32 s68, s68, s81\ns_and_b32 s68, s68, 15')
        a(f's_lshl_b32 s{sXO}, s68, 7\ns_mul_i32 s{sWOF}, s68, {64*6144}')
        a(f's_lshl_b32 s{sM}, s{sWV}, 12\ns_add_u32 s{sM}, s{sM}, s{sSLOT}')
        if 'samek' in a.opts: a(f's_mov_b32 s{sXO}, 0\ns_mov_b32 s{sWOF}, 0')
        for p in range(4):
            if 'nodma' in a.opts: continue
            a(f's_add_u32 m0, s{sM}, {1024*p}\nbuffer_load_dwordx4 v{10+p}, {srd(SX)}, s{sXO} offen lds')
        a(f's_lshl_b32 s{sM}, s{sWV}, 11\ns_add_u32 s{sM}, s{sM}, s{sSLOT}')
        for seg in (1, 2, 0):
            a(f's_add_u32 s68, s{sWOF}, {2048*seg}')
            for p in range(2):
                if 'nodma' in a.opts: continue
                a(f's_add_u32 m0, s{sM}, {16384+8192*seg+1024*p}\nbuffer_load_dwordx4 v{14+p}, {srd(SW)}, s68 offen lds')
        a(f's_add_u32 s{sCNT}, s{sCNT}, 1\ns_add_u32 s{sSLOT}, s{sSLOT}, {SLOT}\ns_cmp_eq_u32 s{sSLOT}, {3*SLOT}\ns_cselect_b32 s{sSLOT}, 0, s{sSLOT}')
    a(f's_mov_b32 s72, 0')
    a.label('L_ld')
    issue()
    a(f's_cmp_eq_u32 s{sCNT}, 1\ns_cbranch_scc1 L_ld')
    a(f's_cmp_eq_u32 s{sCNT}, 16\ns_cbranch_scc1 L_ld_done\ns_waitcnt vmcnt(10)\ns_barrier\ns_branch L_ld')
    a.label('L_ld_done')
    a(f's_mul_i32 s{sUB}, s{sWV}, {USZ}\ns_add_u32 s{sUB}, s{sUB}, {L_U+512}\ns_mul_i32 s{sTB}, s{sWV}, {TABSZ}\ns_add_u32 s{sTB}, s{sTB}, {L_TAB}')
    a(f's_lshl_b32 s68, s{sJ}, 7\ns_lshl_b32 s69, s{sWV}, 5\ns_add_u32 s68, s68, s69\nv_add_u32 v5, s68, v3\nv_lshlrev_b32 v5, 11, v5')
    a('v_bfe_u32 v6, v0, 4, 1\nv_lshlrev_b32 v6, 1, v6\nv_xor_b32 v6, v6, v4\nv_lshl_add_u32 v10, v6, 4, v5\nv_xor_b32 v11, 64, v10')
    a(f's_lshl_b32 s68, s{sG}, 7')
    for p in range(4):
        a(f's_add_u32 m0, s{sUB}, {1024*p}\nbuffer_load_dwordx4 v{10+(p&1)}, {srd(SU)}, s68 offen lds\ns_add_u32 s68, s68, 16384')
    a(f's_lshl_b32 s{sCH}, s{sG}, 6\ns_lshl_b32 s68, s{sJ}, 2\ns_add_u32 s{sCH}, s{sCH}, s68\ns_add_u32 s{sCH}, s{sCH}, s{sWV}')
    PR = 20
    a(f's_lshl_b32 s68, s{sCH}, 8\nv_lshlrev_b32 v5, 2, v0\nv_add_u32 v5, s68, v5\ns_lshl_b32 s68, s{sCH}, 1\nv_mov_b32 v6, s68\nv_and_b32 v7, 3, v0\nv_lshlrev_b32 v7, 2, v7')
    for i in range(6): a(f'global_load_dword v{PR+i}, v5, s[{12+2*i}:{13+2*i}]')
    a(f'global_load_ushort v26, v6, s[24:25]\nglobal_load_ushort v27, v6, s[26:27]\nglobal_load_dword v28, v7, s[30:31] sc1')
    a('s_waitcnt vmcnt(23)\ns_barrier\ns_waitcnt vmcnt(13)\ns_barrier')
    a.stamp(1)
    a('v_lshrrev_b32 v5, 4, v0\nv_bfe_u32 v6, v0, 2, 2\nv_lshl_add_u32 v6, v5, 3, v6\nv_lshlrev_b32 v6, 7, v6\nv_and_b32 v8, 3, v0\nv_lshl_add_u32 v6, v8, 3, v6')
    a(f'v_bfe_u32 v8, v0, 3, 2\nv_lshl_add_u32 v6, v8, 5, v6\nv_add_u32 v6, s{sUB}, v6')
    for cq in range(1, 4): a(f'v_xor_b32 v{9+cq}, {cq<<5}, v6')
    a(f'v_and_b32 v8, 15, v0\nv_lshlrev_b32 v8, 12, v8\nv_lshl_add_u32 v8, v5, 4, v8')
    a(f's_lshl_b32 s68, s{sG}, 18\ns_lshl_b32 s69, s{sJ}, 8\ns_add_u32 s68, s68, s69\ns_lshl_b32 s69, s{sWV}, 6\ns_add_u32 s68, s68, s69\ns_add_u32 s68, s68, {WS_UT}')
    a('s_waitcnt vmcnt(9)')
    for cq in range(4):
        for r2 in range(2): a(f'ds_read_b64_tr_b16 {vr(32+4*cq+2*r2,2)}, v{6 if cq == 0 else 9+cq} offset:{512*r2}')
    for cq in range(4):
        a(f's_waitcnt lgkmcnt({6-2*cq})\nbuffer_store_dwordx4 {vr(32+4*cq,4)}, v8, {srd(SWS)}, s68 offen sc1\ns_add_u32 s68, s68, 65536')
    a.stamp(2)
    a(f'v_lshlrev_b32 v17, 11, v3\nv_lshl_add_u32 v17, v16, 4, v17\ns_lshl_b32 s68, s{sJ}, 7\nv_add_u32 v17, s68, v17')
    def wo_piece(b, sp, lds_s, lds_c):
        a(f's_add_u32 m0, {lds_s}, {lds_c}\nbuffer_load_dwordx4 v17, {srd(SWO)}, {sp} offen lds')
    def wo_block_shared(b):
        a(f's_add_u32 s68, s{sJ}, {b}\ns_and_b32 s68, s68, 15\ns_lshl_b32 s68, s68, 17\ns_add_u32 s68, s68, s71')
        wo_piece(b, 's68', 's70', wo_blk(b)); a('s_add_u32 s68, s68, 16384'); wo_piece(b, 's68', 's70', wo_blk(b) + 1024)
    a(f's_lshl_b32 s70, s{sWV}, 11\ns_lshl_b32 s71, s{sWV}, 15')
    DT, KA, YF, XF = 29, 48, 64, 96
    AR_, AI, BR, BI, CR, CI = 32, 33, 34, 35, 36, 37
    E1, E8, E256, TT = 38, 40, 42, 44
    XS = 128
    a('s_waitcnt vmcnt(4)')
    hi = struct.unpack('<f', struct.pack('<I', f2u(LOG2E) & 0xffffff00))[0]
    a(f'v_lshlrev_b32 v26, 16, v26\nv_mul_f32 v30, {f2u(hi)}, v26\nv_rndne_f32 v31, v30\nv_sub_f32 v30, v30, v31\ns_mov_b32 s68, {f2u(LOG2E-hi)}\nv_fma_f32 v30, v26, s68, v30')
    a(f'v_exp_f32 v30, v30\nv_cvt_i32_f32 v31, v31\nv_ldexp_f32 v30, v30, v31\nv_cvt_pk_bf16_f32 v30, v30, v30\nv_lshlrev_b32 v{DT}, 16, v30')
    a(f'v_lshlrev_b32 v27, 16, v27\nv_cmp_eq_u32 vcc, 0, v0')
    for i in range(1, 16): a(f'v_mov_b32 v{KA+i}, 0')
    a(f'v_cndmask_b32 v{KA}, 0, v27, vcc')
    a('v_and_b32 v5, 31, v0\nv_lshrrev_b32 v6, 5, v0\nv_lshlrev_b32 v6, 4, v6')
    a(f'v_add_u32 v6, s{sTB}, v6\nv_mul_u32_u24 v8, 272, v5\nv_add_u32 v18, v8, v6')
    def mrow(half, rho): return 8*(rho >> 2) + 4*half + (rho & 3)
    base_of = {}
    seg1 = [0,0,2,4,4,4,6,8,8]
    for half in range(2):
        for rho in range(9): base_of[mrow(half, rho)] = rho if half == 0 else 256 + seg1[rho]
        for k in range(3): base_of[mrow(half, 9+k)] = 512 + 256*half + 4*k
        for k in range(2):
            base_of[mrow(half, 12+k)] = 1024 + 256*half + 8*k
            base_of[mrow(half, 14+k)] = 1536 + 256*half + 8*k
    pos = {}
    for m in range(32): pos.setdefault(base_of[m], m)
    a('v_mov_b32 v19, v18')
    for m in range(32):
        if pos[base_of[m]] != m:
            a(f'v_cmp_eq_u32 vcc, {m}, v5\nv_add_u32 v8, {272*pos[base_of[m]]}, v6\nv_cndmask_b32 v19, v19, v8, vcc')
    def cmul(d, x, e):
        a(f'v_pk_mul_f32 {vr(TT,2)}, {vr(x,2)}, {vr(e,2)} op_sel_hi:[0,1]')
        a(f'v_pk_fma_f32 {vr(d,2)}, {vr(x,2)}, {vr(e,2)}, {vr(TT,2)} op_sel:[1,1,0] op_sel_hi:[1,0,1] neg_lo:[0,1,0]')
    cnt = [0]
    TOFF = 16384
    def put(x, row, neg):
        t = 46 + (cnt[0] & 1); cnt[0] += 1
        a(f'v_cvt_pk_bf16_f32 v{t}, v{x}, {"-" if neg else ""}v{x+1}\nds_write_addtid_b32 v{t} offset:{TOFF + 272*row}')
    a(f's_mov_b32 s72, 0')
    a('.p2align 3')
    a.label('L_kgen')
    for i in range(6): a(f'v_lshlrev_b32 v{32+i}, 16, v{PR+i}\nv_lshrrev_b32 v{PR+i}, 16, v{PR+i}')
    a(f's_sub_u32 m0, s{sTB}, {TOFF}')
    for r in (AR_, AI, BR, BI): a(f'v_mul_f32 v{r}, v{DT}, v{r}')
    a(f'v_mul_f32 v{AR_}, {f2u(LOG2E)}, v{AR_}\nv_mul_f32 v{AI}, 0.15915494, v{AI}')
    cmul(XS, BR, CR)
    for L, e in ((8, E8), (1, E1), (256, E256)):
        if L == 1: a(f'v_exp_f32 v30, v{AR_}\nv_fract_f32 v31, v{AI}')
        else: a(f'v_mul_f32 v30, {f2u(float(L))}, v{AR_}\nv_mul_f32 v31, {f2u(float(L))}, v{AI}\nv_exp_f32 v30, v30\nv_fract_f32 v31, v31')
        a(f'v_cos_f32 v{e}, v31\nv_sin_f32 v{e+1}, v31\ns_nop 0\nv_pk_mul_f32 {vr(e,2)}, {vr(e,2)}, v[30:31] op_sel_hi:[1,0]')
    a(f'v_mov_b32 v46, 0x3f80\nds_write_addtid_b32 v46 offset:{TOFF}'); cnt[0] = 1
    put(E8, 1, False)
    YC = 146
    cmul(YC, E8, E8); put(YC, 2, False)
    for n in range(3, 32): cmul(YC, YC, E8); put(YC, n, False)
    for k in range(8): a(f'ds_read_b128 {vr(YF+4*k,4)}, v18 offset:{32*k}')
    put(XS, pos[0], True)
    for k in range(1, 9): cmul(XS+2*k, XS+2*k-2, E1); put(XS+2*k, pos[k], True)
    for blk in range(1, 8):
        ks = (0,2,4,6,8) if blk == 1 else (0,4,8) if blk < 4 else (0,8)
        for k in ks: cmul(XS+2*k, XS+2*k, E256); put(XS+2*k, pos[256*blk+k], True)
    for k in range(8): a(f'ds_read_b128 {vr(XF+4*k,4)}, v19 offset:{32*k}')
    for k in range(8):
        a(f's_waitcnt lgkmcnt({7-k})\nv_mfma_f32_32x32x16_bf16 {vr(KA,16)}, {vr(XF+4*k,4)}, {vr(YF+4*k,4)}, {vr(KA,16)}')
    a('s_cmp_eq_u32 s72, 1\ns_cbranch_scc1 L_kgen_done')
    a('s_waitcnt vmcnt(0)')
    a.poll_global(28, 7, None, 'dbg', first_issued=True)
    a(f's_lshl_b32 s68, s{sG}, 8\ns_lshl_b32 s69, s{sJ}, 4\ns_add_u32 s68, s68, s69\ns_lshl_b32 s69, s{sWV}, 2\ns_add_u32 s81, s68, s69')
    a.arrive(2, sG, 73, 8, 9)
    a.stamp(3)
    for b in range(0, 3): wo_block_shared(b)
    a('s_mov_b32 s72, 1\ns_branch L_kgen')
    a.label('L_kgen_done')
    a.stamp(4)
    a.await_(2, sG, 73, 8, 9)
    a.stamp(5)
    a(f'v_lshlrev_b32 v15, 4, v0\ns_lshl_b32 s68, s{sCH}, 12\ns_add_u32 s68, s68, {WS_UT}\ns_mov_b32 m0, s{sUB}')
    for p in range(4): a(f'buffer_load_dwordx4 v15, {srd(SWS)}, s68 offen offset:{1024*p} sc1 lds')
    CB = 4160
    a(f's_add_u32 s68, s{sTB}, {4080-3072}\nv_sub_u32 v5, s68, v15')
    a('v_and_b32 v6, 1, v0\nv_cmp_eq_u32 vcc, 1, v6')
    def chunk(g, copy, pairs, t):
        for i, (lo, hi_) in enumerate(pairs): a(f'v_cvt_pk_bf16_f32 v{t+i}, v{lo}, v{hi_}')
        a(f'ds_write_b128 v5, {vr(t,4)} offset:{CB*copy + 1024*(3-g)}')
    k = lambda r: KA + r
    chunk(0, 0, [(k(7),k(6)), (k(5),k(4)), (k(3),k(2)), (k(1),k(0))], 64)
    chunk(0, 1, [(k(8),k(7)), (k(6),k(5)), (k(4),k(3)), (k(2),k(1))], 68)
    chunk(1, 0, [(k(11),k(11)), (k(10),k(10)), (k(10),k(9)), (k(9),k(9))], 72)
    chunk(1, 1, [(k(11),k(11)), (k(11),k(10)), (k(10),k(10)), (k(9),k(9))], 76)
    for g in (2, 3):
        z0, z8 = k(8+2*g), k(9+2*g); X = 30 + (g & 1)
        a(f'v_cndmask_b32 v{X}, v{z0}, v{z8}, vcc')
        chunk(g, 0, [(z8,z8), (z8,X), (z0,z0), (z0,z0)], 64+8*g)
        chunk(g, 1, [(z8,z8), (z8,z8), (X,z0), (z0,z0)], 68+8*g)
    a(f'v_mov_b32 v8, 0\nv_cvt_pk_bf16_f32 v9, v{KA}, v8\nv_cmp_eq_u32 vcc, 0, v0\nv_and_b32 v6, 7, v0\nv_lshlrev_b32 v6, 2, v6\nv_cndmask_b32 v9, 0, v9, vcc')
    a(f'v_cmp_gt_u32 vcc, 8, v0\nv_mov_b32 v11, {CB}\nv_add_u32 v6, s{sTB}, v6\nv_cndmask_b32 v11, 0, v11, vcc\nv_add_u32 v6, v6, v11\ns_mov_b64 exec, 0xffff\nds_write_b32 v6, v9 offset:4096\ns_mov_b64 exec, -1')
    for b in range(3, 7): wo_block_shared(b)
    a(f'v_and_b32 v6, 3, v0\nv_lshlrev_b32 v6, 2, v6\nv_add_u32 v6, {L_FLG}, v6')
    a.poll_lds(9, 6)
    for b in range(7, 12): wo_block_shared(b)
    CA, AF, BF = 32, 64, 96
    VA = (10, 11, 12, 13); VBu = 14
    a('v_and_b32 v5, 15, v0\nv_lshrrev_b32 v6, 4, v0\nv_and_b32 v8, 1, v0\nv_add_u32 v9, v5, v8\nv_lshlrev_b32 v9, 1, v9\nv_lshlrev_b32 v11, 4, v6\nv_sub_u32 v9, v11, v9')
    a(f'v_xor_b32 v8, 1, v8\nv_mul_u32_u24 v8, {CB}, v8\nv_add_u32 v9, v9, v8\ns_add_u32 s68, s{sTB}, {2*(2048-16)-512}\nv_add_u32 v{VA[0]}, s68, v9')
    for i in range(1, 4): a(f'v_subrev_u32 v{VA[i]}, {1024*i}, v{VA[0]}')
    a(f'v_lshlrev_b32 v5, 5, v5\nv_lshl_add_u32 v5, v6, 4, v5\ns_sub_u32 s68, s{sUB}, 32\nv_add_u32 v{VBu}, s68, v5')
    for i in range(32): a(f'v_mov_b32 v{CA+i}, 0')
    def rdA(D):
        o = 128*(1 - (D & 1))
        return [f'ds_read2_b32 {vr(AF+4*D,2)}, v{VA[D>>1]} offset0:{o} offset1:{o+1}', f'ds_read2_b32 {vr(AF+4*D+2,2)}, v{VA[D>>1]} offset0:{o+2} offset1:{o+3}']
    def rdB(t): return f'ds_read_b128 {vr(BF+4*t,4)}, v{VBu} offset:{512*t}'
    for D in range(7, 0, -1):
        for l in rdA(D): a(l)
    a('s_waitcnt vmcnt(18) lgkmcnt(0)')
    a.stamp(6)
    for t in range(8): a(rdB(t))
    for l in rdA(0): a(l)
    a('s_mov_b32 s72, 0')
    a('.p2align 3')
    a.label('L_conv')
    a(f'v_subrev_u32 v{VA[3]}, 64, v{VA[3]}\nv_subrev_u32 v{VA[2]}, 64, v{VA[2]}\nv_subrev_u32 v{VA[1]}, 64, v{VA[1]}\nv_subrev_u32 v{VA[0]}, 64, v{VA[0]}\nv_subrev_u32 v{VBu}, 64, v{VBu}\ns_add_u32 s72, s72, 1')
    waits = {7: 9, 6: 10, 5: 11, 4: 6}
    for D in range(7, -1, -1):
        if D in waits: a(f's_waitcnt lgkmcnt({waits[D]})\ns_nop 0')
        for t in range(8 - D):
            a(f'v_mfma_f32_16x16x32_bf16 {vr(CA+4*(D+t),4)}, {vr(AF+4*D,4)}, {vr(BF+4*t,4)}, {vr(CA+4*(D+t),4)}')
            if D == 0: a(rdB(t))
        for l in rdA(D): a(l)
    a('s_cmp_eq_u32 s72, 5\ns_cbranch_scc0 L_conv_n')
    a(f's_waitcnt vmcnt(0)\ns_lshl_b32 s68, s{sWV}, 2\ns_add_u32 s68, s68, {L_FLW}\nv_mov_b32 v8, s68\nv_mov_b32 v9, 1\ns_waitcnt lgkmcnt(0)\nds_write_b32 v8, v9\ns_waitcnt lgkmcnt(0)')
    a.label('L_conv_n')
    a('s_cmp_lt_u32 s72, 8\ns_cbranch_scc1 L_conv')
    a('s_waitcnt lgkmcnt(0)')
    a.stamp(7); a.stamp(13)
    a('v_bfe_u32 v5, v0, 4, 1\nv_lshlrev_b32 v5, 15, v5\nv_bfe_u32 v6, v0, 1, 3\nv_lshl_add_u32 v5, v6, 12, v5')
    a(f'v_and_b32 v6, 1, v0\nv_lshrrev_b32 v11, 5, v0\nv_lshl_add_u32 v6, v6, 1, v11\ns_bfe_u32 s68, s{sJ}, 0x20001\nv_xor_b32 v6, s68, v6\nv_lshl_add_u32 v5, v6, 4, v5')
    a(f's_lshl_b32 s68, s{sG}, 18\ns_and_b32 s69, s{sCH}, 63\ns_lshl_b32 s69, s69, 6\ns_add_u32 s68, s68, s69\ns_add_u32 s68, s68, {WS_YT}')
    for tp in range(4):
        o = 64 + 4*tp; c0 = CA + 8*tp
        for i in range(4): a(f'v_cvt_pk_bf16_f32 v{o+i}, v{c0+2*i}, v{c0+2*i+1}')
        a(f'v_permlane16_swap_b32 v{o}, v{o+2}\nv_permlane16_swap_b32 v{o+1}, v{o+3}')
        a(f'buffer_store_dwordx4 {vr(o,4)}, v5, {srd(SWS)}, s68 offen sc1\ns_add_u32 s68, s68, 65536')
    a(f's_add_u32 s68, s{sJ}, s{sWV}\ns_add_u32 s68, s68, 12\ns_and_b32 s68, s68, 15\ns_lshl_b32 s68, s68, 17')
    for p in range(8):
        wo_piece(0, 's68', f's{sTB}', 1024*p); a('s_add_u32 s68, s68, 16384')
    a('s_waitcnt vmcnt(8)')
    a.arrive(3, sG, 73, 10, 11)
    a.stamp(8)
    a('s_waitcnt vmcnt(0)\nds_write_b32 v8, v9 offset:16')
    a.await_(3, sG, 73, 10, 11)
    a.stamp(9)
    a(f's_lshl_b32 s68, s81, 10\ns_add_u32 s68, s68, {WS_YT}\ns_mov_b32 m0, s{sUB}')
    for p in range(4): a(f'buffer_load_dwordx4 v15, {srd(SWS)}, s68 offen offset:{1024*p} sc1 lds')
    a('v_and_b32 v5, 3, v0\nv_lshrrev_b32 v6, 5, v0\nv_lshl_add_u32 v6, v6, 2, v5\nv_lshlrev_b32 v6, 9, v6\nv_bfe_u32 v11, v0, 2, 2\nv_lshl_add_u32 v6, v11, 6, v6')
    a(f'v_lshl_add_u32 v6, v5, 4, v6\nv_bfe_u32 v12, v0, 4, 1\nv_lshl_add_u32 v6, v12, 3, v6\nv_add_u32 v20, s{sUB}, v6')
    for i in range(1, 4): a(f'v_xor_b32 v{20+i}, {16*i}, v20')
    a('v_lshl_add_u32 v5, v12, 2, v5\nv_lshlrev_b32 v5, 12, v5\nv_lshrrev_b32 v6, 5, v0\nv_lshl_add_u32 v6, v6, 2, v11\nv_lshl_add_u32 v5, v6, 4, v5')
    a(f's_lshl_b32 s68, s{sJ}, 19\ns_lshl_b32 s69, s{sWV}, 17\ns_add_u32 s68, s68, s69\ns_lshl_b32 s69, s{sG}, 7\ns_add_u32 s68, s68, s69\ns_add_u32 s68, s68, 2048')
    a('s_waitcnt vmcnt(0)')
    for i in range(4):
        for r2 in range(2): a(f'ds_read_b64_tr_b16 {vr(32+4*i+2*r2,2)}, v{20+i} offset:{256*r2}')
    for i in range(4):
        a(f's_waitcnt lgkmcnt({6-2*i})\nbuffer_store_dwordx4 {vr(32+4*i,4)}, v5, {srd(SOUT)}, s68 offen\ns_add_u32 s68, s68, 32768')
    if a.stamps:
        a('s_waitcnt vmcnt(0)'); a.stamp(10); a.dump_stamps(1)
    a.label('L_end')
    a('s_endpgm')

HEADER = open('concat_heads__linear_attn_block__ssm_conv_s4__prompt.s.ref').read().split('; Override')[0].rstrip('\n').split('\n') if True else []
def build(stamps=False, code_bytes=16384, verbose=False, opts=()):
    a = K(stamps, opts)
    prologue(a, code_bytes); g_path(a); s_path(a)
    body = hazard.fix(a.text(), verbose)
    return file_text(HEADER + ['; @launch grid=(256,1,1) block=(512,1,1) lds=163840'], [(NAME, body + '\n', kernel_desc(NAME, 256, 102, 256))])
def text_size(src):
    import subprocess, tempfile, os, re
    d = tempfile.mkdtemp(); open(d + '/a.s', 'w').write(src)
    subprocess.run(['clang', '-x', 'assembler', '-target', 'amdgcn-amd-amdhsa', '-mcpu=gfx950', '-c', d + '/a.s', '-o', d + '/a.o'], check=True)
    o = subprocess.run(['llvm-readelf', '-S', d + '/a.o'], capture_output=True, text=True).stdout
    return int(re.search(r'\.text\s+PROGBITS\s+\S+\s+\S+\s+(\S+)', o).group(1), 16)
if __name__ == '__main__':
    out = sys.argv[1]; stamps = 'stamps' in sys.argv
    n = text_size(build(stamps, opts=sys.argv[2:]))
    print('code bytes', n)
    open(out, 'w').write(build(stamps, code_bytes=n, verbose='-v' in sys.argv, opts=sys.argv[2:]))
```

```python
import sys, struct
from asmgen import *
import hazard

NAME = 'concat_heads__linear_attn_block__ssm_conv_s4__prompt_kernel'
def f2u(x): return struct.unpack('<I', struct.pack('<f', x))[0]
LOG2E = 1.4426950408889634
EPS = 1e-6

WS_ZP  = 65536
WS_KVP = 1 << 20
WS_O   = 4 << 20
WS_UT  = 8 << 20
WS_YT  = 12 << 20
WS_SIZE = 16 << 20
WS_STAMP = 16 << 20
SLOT = 40960
L_TAB = 40960; TABSZ = 8704
L_GS = 133120
L_U = 145408; USZ = 4608
L_FLG = L_U
L_FLW = L_U + USZ
L_SYN = L_U + 2*USZ
def wo_blk(b):
    if b < 7: return 75776 + 8192*b
    if b < 12: return 8192*(b-7)
    return L_TAB + TABSZ*(b-12)
SPIN = 400000

SX, SW, SWO, SU, SWS, SOUT = 36, 40, 44, 48, 52, 56
sXCD, sI, sCB, sRB, sG, sJ, sWV, sROT = 60, 61, 62, 63, 64, 65, 66, 67
def srd(n): return f's[{n}:{n+3}]'
def vr(a, n): return f'v[{a}:{a+n-1}]'
def mf16(d, x, y, c=None): return f'v_mfma_f32_16x16x32_bf16 {vr(d,4)}, {vr(x,4)}, {vr(y,4)}, {vr(d,4) if c is None else c}'

class K(Asm):
    def __init__(self, stamps=False, opts=()):
        super().__init__()
        self.stamps = stamps; self.opts = set(opts)
    def opt(self, prefix, default):
        for o in self.opts:
            if o.startswith(prefix) and o[len(prefix):].isdigit(): return int(o[len(prefix):])
        return default
    def cstamp(self, idx):
        if not self.stamps: return
        self(f's_memtime s[98:99]\ns_waitcnt lgkmcnt(0)\ns_mov_b32 s{82+idx}, s98')
    def stamp(self, idx):
        if not self.stamps: return
        self(f's_memrealtime s[98:99]\ns_waitcnt lgkmcnt(0)\ns_mov_b32 s{82+idx}, s98')
    def dump_stamps(self, role):
        if not self.stamps: return
        a = self
        for o in a.opts:
            if o.startswith('probe' + 'GS'[role]):
                L = a.newlabel('probe'); a.label(L)
                a(f's_sleep 2\ns_memrealtime s[98:99]\ns_waitcnt lgkmcnt(0)\ns_sub_u32 s68, s98, s{82+int(o[6:])}\ns_cmp_lt_u32 s68, 5000\ns_cbranch_scc1 {L}')
        a(f's_lshl_b32 s68, s2, 3\ns_add_u32 s68, s68, s{sWV}\ns_add_u32 s68, s68, {4*role}\ns_lshl_b32 s68, s68, 6\ns_add_u32 s68, s68, {WS_STAMP}')
        a('v_mov_b32 v0, s68')
        for i in range(16): a(f'v_mov_b32 v{4+i}, s{82+i}')
        a('s_mov_b64 exec, 1')
        for i in range(4): a(f'global_store_dwordx4 v0, {vr(4+4*i,4)}, s[32:33] offset:{16*i}')
        a('s_mov_b64 exec, -1')
    def check_cleared(self, vt, voff):
        a = self; L = a.newlabel('clr'); D = a.newlabel('clrd')
        a(f's_mov_b32 s69, {SPIN}')
        a.label(L)
        a(f'v_cmp_ne_u32 vcc, 0, v{vt}\ns_cmp_eq_u64 vcc, -1\ns_cbranch_scc1 {D}')
        a(f'global_load_dword v{vt}, v{voff}, s[30:31] sc1\ns_waitcnt vmcnt(0)')
        a(f's_sub_u32 s69, s69, 1\ns_cmp_lg_u32 s69, 0\ns_cbranch_scc1 {L}')
        a.label(D)
    def arrive(self, idx, sgrp, slast, va, vt):
        a = self; N = a.newlabel('notlast')
        a(f'v_mov_b32 v{va}, {L_SYN + 8*idx}\nv_mov_b32 v{vt}, 1\ns_mov_b64 exec, 1\nds_add_rtn_u32 v{vt}, v{va}, v{vt}')
        a(f's_lshl_b32 s68, s{sgrp}, 8\ns_add_u32 s68, s68, {4096*idx}\ns_waitcnt lgkmcnt(0)\nv_readfirstlane_b32 s{slast}, v{vt}\nv_mov_b32 v{vt}, 1\nv_mov_b32 v{va}, 0\ns_nop 1')
        a(f's_cmp_eq_u32 s{slast}, 3\ns_cbranch_scc0 {N}\nbuffer_atomic_add v{vt}, v{va}, {srd(SWS)}, s68 offen sc1')
        a.label(N)
        a('s_mov_b64 exec, -1')
    def await_(self, idx, sgrp, slast, va, vt, scalar=False):
        a = self; N = a.newlabel('follow'); L = a.newlabel('gp'); D = a.newlabel('gpd'); E = a.newlabel('gpe')
        a(f's_cmp_eq_u32 s{slast}, 3\ns_cbranch_scc0 {N}')
        a(f's_lshl_b32 s68, s{sgrp}, 8\ns_add_u32 s68, s68, {4096*idx}\nv_mov_b32 v{va}, 0\ns_mov_b32 s69, {SPIN}\ns_mov_b64 exec, 1')
        a.label(L)
        if scalar: a(f's_load_dword s3, s[32:33], s68 glc\ns_waitcnt lgkmcnt(0)\ns_cmp_eq_u32 s3, 16\ns_cbranch_scc1 {D}')
        else: a(f'buffer_load_dword v{vt}, v{va}, {srd(SWS)}, s68 offen sc1\ns_waitcnt vmcnt(0)\nv_cmp_eq_u32 vcc, 16, v{vt}\ns_cbranch_vccnz {D}')
        if a.opt('gs', 0): a(f's_sleep {a.opt("gs", 0)}')
        a(f's_sub_u32 s69, s69, 1\ns_cmp_lg_u32 s69, 0\ns_cbranch_scc1 {L}')
        a.label(D)
        a(f'v_mov_b32 v{va}, {L_SYN + 8*idx + 4}\nv_mov_b32 v{vt}, 1\nds_write_b32 v{va}, v{vt}\ns_mov_b64 exec, -1\ns_branch {E}')
        a.label(N)
        a(f'v_mov_b32 v{va}, {L_SYN + 8*idx + 4}')
        a.poll_lds(vt, va, 1)
        a.label(E)
    def poll_lds(self, vt, vaddr, sleep=0):
        a = self; L = a.newlabel('lpoll'); D = a.newlabel('lpolld')
        a(f's_mov_b32 s69, {SPIN*8}')
        a.label(L)
        a(f'ds_read_b32 v{vt}, v{vaddr}\ns_waitcnt lgkmcnt(0)\nv_cmp_ne_u32 vcc, 0, v{vt}\ns_cmp_eq_u64 vcc, -1\ns_cbranch_scc1 {D}')
        if sleep: a(f's_sleep {sleep}')
        a(f's_sub_u32 s69, s69, 1\ns_cmp_lg_u32 s69, 0\ns_cbranch_scc1 {L}')
        a.label(D)
    def srds(self):
        self('s_waitcnt lgkmcnt(0)')
        for n, p in ((SX, 4), (SW, 6), (SWO, 8), (SU, 10), (SWS, 32), (SOUT, 28)):
            self(f's_mov_b64 s[{n}:{n+1}], s[{p}:{p+1}]')

def prologue(a):
    a.stamp(0)
    a('s_cmp_ge_u32 s2, 256\ns_cbranch_scc1 L_end')
    a('s_load_dwordx16 s[4:19], s[0:1], 0\ns_load_dwordx8 s[20:27], s[0:1], 64\ns_load_dwordx4 s[28:31], s[0:1], 96\ns_load_dwordx2 s[32:33], s[0:1], 112')
    a('v_lshrrev_b32 v1, 6, v0\nv_and_b32 v0, 63, v0\ns_getpc_b64 s[34:35]')
    a(f'v_readfirstlane_b32 s{sWV}, v1')
    a(f's_and_b32 s{sXCD}, s2, 7\ns_lshr_b32 s{sI}, s2, 3')
    a(f's_and_b32 s68, s{sXCD}, 3\ns_lshl_b32 s68, s68, 2\ns_and_b32 s69, s{sI}, 3\ns_add_u32 s{sCB}, s68, s69')
    a(f's_lshr_b32 s68, s{sXCD}, 2\ns_lshl_b32 s68, s68, 3\ns_lshr_b32 s70, s{sI}, 2\ns_add_u32 s{sRB}, s68, s70')
    a(f's_add_u32 s{sROT}, s69, s70')
    a(f's_lshl_b32 s68, s{sXCD}, 1\ns_lshr_b32 s69, s{sI}, 4\ns_add_u32 s{sG}, s68, s69\ns_and_b32 s{sJ}, s{sI}, 15')
    for n, sz in ((SX, 4<<20), (SW, 6<<20), (SWO, 2<<20), (SU, 4<<20), (SWS, WS_SIZE), (SOUT, 8<<20)):
        a(f's_mov_b32 s{n+2}, {sz}\ns_mov_b32 s{n+3}, 0x20000')
    a(f's_cmp_lt_u32 s{sWV}, 4\ns_cbranch_scc1 L_G')

AQ, AK, AV = 16, 48, 80
F16 = (112, 152)
def g_path(a, code_bytes):
    sRH, sHH, sHEAD, sCNT = 73, 74, 75, 77
    OUTF = 'sc1' if 'outsc1' in a.opts else 'nt' if 'outnt' in a.opts else ''
    a.label('L_G')
    nl = (code_bytes + 4095) // 4096
    a(f's_cmp_lg_u32 s{sWV}, 0\ns_cbranch_scc1 L_nopf')
    a(f'v_min_u32 v2, {nl-1}, v0\nv_lshlrev_b32 v2, 5, v2\nv_add_u32 v2, s{sI}, v2\nv_lshlrev_b32 v2, 7, v2\nv_min_u32 v2, {code_bytes-256}, v2')
    a('global_load_dword v250, v2, s[34:35]')
    a.label('L_nopf')
    a('s_setprio 2')
    a(f's_and_b32 s{sRH}, s{sWV}, 1\ns_lshr_b32 s{sHH}, s{sWV}, 1\ns_lshl_b32 s{sHEAD}, s{sCB}, 1\ns_add_u32 s{sHEAD}, s{sHEAD}, s{sHH}')
    a('v_lshlrev_b32 v15, 4, v0')
    a('v_mov_b32 v8, 0\nv_mov_b32 v9, 0\nv_mov_b32 v10, 0\nv_mov_b32 v11, 0')
    a.srds()
    a('s_cmp_lg_u32 s2, 0\ns_cbranch_scc1 L_nozero')
    a(f's_lshl_b32 s68, s{sWV}, 12')
    for i in range(4): a(f'buffer_store_dwordx4 v[8:11], v15, {srd(SWS)}, s68 offen offset:{1024*i} sc1')
    a(f's_lshl_b32 s68, s{sWV}, 2\nv_mov_b32 v2, s68\nv_mov_b32 v3, 1\ns_waitcnt vmcnt(0)\ns_mov_b64 exec, 1')
    a('global_store_dword v2, v3, s[30:31] sc1\ns_mov_b64 exec, -1')
    a.label('L_nozero')
    a(f's_mul_i32 s68, s{sWV}, {USZ}\ns_add_u32 s68, s68, {L_U}\nv_lshlrev_b32 v2, 3, v0\nv_add_u32 v2, s68, v2\nds_write_b64 v2, v[8:9]')
    AD = 192
    a('v_and_b32 v2, 15, v0\nv_lshrrev_b32 v3, 4, v0\nv_bfe_u32 v4, v0, 1, 3\nv_xor_b32 v4, v4, v3\nv_lshlrev_b32 v4, 4, v4\nv_lshl_add_u32 v4, v2, 7, v4')
    a(f's_lshl_b32 s68, s{sRH}, 13\nv_add_u32 v{AD}, s68, v4\nv_xor_b32 v{AD+1}, 64, v{AD}')
    a('v_bfe_u32 v4, v0, 2, 2\nv_lshl_add_u32 v5, v3, 3, v4\nv_lshlrev_b32 v5, 7, v5\nv_and_b32 v7, 3, v0\nv_lshl_add_u32 v5, v7, 3, v5')
    a(f'v_bfe_u32 v6, v0, 3, 2\ns_lshl_b32 s68, s{sHH}, 1\nv_xor_b32 v6, s68, v6\nv_lshl_add_u32 v5, v6, 5, v5\nv_add_u32 v{AD+2}, 16384, v5\nv_xor_b32 v{AD+3}, 32, v{AD+2}')
    for sl in (1, 2):
        for i in range(4): a(f'v_add_u32 v{AD+4*sl+i}, {SLOT*sl}, v{AD+i}')
    a(f's_mov_b32 s72, {f2u(EPS)}\ns_mov_b32 s70, {f2u(LOG2E)}\ns_mov_b32 s71, {f2u(LOG2E)}\ns_mov_b32 s{sCNT}, 0')
    for r in range(AQ, AV): a(f'v_mov_b32 v{r}, s72')
    for r in range(AV, AV+32): a(f'v_mov_b32 v{r}, 0')
    def reads(sl, kk):
        f = F16[kk]
        x = lambda mt: f'ds_read_b128 {vr(f+4*mt,4)}, v{AD+4*sl+kk} offset:{2048*mt}'
        w = lambda seg, nt, r2: f'ds_read_b64_tr_b16 {vr(f+16+8*seg+4*nt+2*r2,2)}, v{AD+4*sl+2+nt} offset:{seg*8192+kk*4096+r2*512}'
        o = [x(0), w(1,0,0), w(1,0,1), x(1), x(2), x(3)]
        for seg, nt in ((1,1), (2,0), (2,1), (0,0), (0,1)): o += [w(seg,nt,0), w(seg,nt,1)]
        return o
    span = a.opt('span', 18)
    def step(kk, rd, tail):
        f = F16[kk]; rd = list(rd); n = len(rd); done = 0
        order = [(seg, nt, mt) for seg in (1, 2, 0) for nt in range(2) for mt in range(4)]
        for i, (seg, nt, mt) in enumerate(order):
            d = 16 + 32*seg + 8*mt + 4*nt; X = f+4*mt; W = f+16+8*seg+4*nt
            if seg == 0: X, W = W, X
            a(mf16(d, X, W))
            while done < n and done * span <= i * n:
                a(rd[done]); done += 1
            if i in tail: a(tail[i])
    a('s_waitcnt lgkmcnt(0)\ns_barrier')
    a.stamp(1); a.cstamp(11)
    for l in reads(0, 0): a(l)
    a('s_waitcnt lgkmcnt(0)')
    a('.p2align 3')
    a.label('L_p1')
    for sl in range(3):
        step(0, reads(sl, 1), {22: 's_waitcnt lgkmcnt(0)\ns_barrier'})
        if sl < 2: step(1, reads(sl+1, 0), {23: 's_waitcnt lgkmcnt(0)\ns_nop 0'})
        else: step(1, reads(0, 0), {21: f's_add_u32 s{sCNT}, s{sCNT}, 1\ns_cmp_lt_u32 s{sCNT}, 5', 23: 's_waitcnt lgkmcnt(0)\ns_cbranch_scc1 L_p1'})
    step(0, reads(0, 1), {23: 's_waitcnt lgkmcnt(0)\ns_nop 0'})
    step(1, [], {})
    a.stamp(2); a.cstamp(12)
    PK, PV, T, ONES, KV, Z, CE = 112, 128, 144, 148, 208, 224, 204
    a(f'v_and_b32 v13, 3, v0\nv_lshlrev_b32 v13, 2, v13\nglobal_load_dword v14, v13, s[30:31] sc1')
    a(f'v_mov_b32 v{CE}, {f2u(-EPS*LOG2E)}\nv_mov_b32 v{CE+1}, {f2u(-EPS*LOG2E)}')
    for i in range(4): a(f'v_mov_b32 v{ONES+i}, 0x3f803f80')
    tcnt = [0]
    def phi2(x, dst, pk=True):
        t = T + 2*(tcnt[0] & 1); tcnt[0] += 1
        a(f'v_pk_fma_f32 {vr(t,2)}, {vr(x,2)}, s[70:71], {vr(CE,2)}' if pk else f'v_fma_f32 v{t}, v{x}, s70, v{CE}\nv_fma_f32 v{t+1}, v{x+1}, s70, v{CE}')
        a(f'v_exp_f32 v{t}, v{t} clamp\nv_exp_f32 v{t+1}, v{t+1} clamp')
        a(f'v_max_f32 v{x}, s72, v{x}\nv_max_f32 v{x+1}, s72, v{x+1}')
        a(f'v_pk_add_f32 {vr(t,2)}, {vr(t,2)}, {vr(x,2)}' if pk else f'v_add_f32 v{t}, v{t}, v{x}\nv_add_f32 v{t+1}, v{t+1}, v{x+1}')
        a(f'v_cvt_pk_bf16_f32 v{dst}, v{t}, v{t+1}')
    def pack(acc, dst, n):
        for u in range(n): a(f'v_cvt_pk_bf16_f32 v{dst+u}, v{acc+2*u}, v{acc+2*u+1}')
    for g in range(2):
        for nt in range(2):
            for m in range(2): pack(AV + 8*(2*g+m) + 4*nt, PV + 8*g + 4*nt + 2*m, 2)
        for nt in range(2):
            for m in range(2):
                for u in range(2): phi2(AK + 8*(2*g+m) + 4*nt + 2*u, PK + 8*g + 4*nt + 2*m + u)
            c = '0' if g == 0 else None
            a('s_nop 1')
            for et in range(2): a(mf16(KV + 8*et + 4*nt, PK + 8*g + 4*nt, PV + 8*g + 4*et, c))
            a(mf16(Z + 4*nt, PK + 8*g + 4*nt, ONES, c))
    a(f's_lshl_b32 s68, s{sWV}, 11\ns_add_u32 s69, s68, {L_GS}\nv_add_u32 v2, s69, v15\ns_xor_b32 s68, s68, 2048\ns_add_u32 s68, s68, {L_GS}\nv_add_u32 v3, s68, v15')
    a(f's_lshl_b32 s68, s{sWV}, 2\ns_add_u32 s69, s68, {L_FLG}\nv_mov_b32 v4, s69\ns_xor_b32 s68, s68, 4\ns_add_u32 s68, s68, {L_FLG}\nv_mov_b32 v5, s68\nv_mov_b32 v6, 1')
    a(f's_cmp_eq_u32 s{sRH}, 0\ns_cbranch_scc1 L_noswap')
    for i in range(8): a(f'v_swap_b32 v{KV+i}, v{KV+8+i}')
    a.label('L_noswap')
    a(f'ds_write_b128 v2, {vr(KV+8,4)}\nds_write_b128 v2, {vr(KV+12,4)} offset:1024\nds_write_b32 v4, v6')
    pack(Z, 112, 4)
    a(f's_lshl_b32 s68, s{sHEAD}, 5\ns_lshl_b32 s69, s{sRB}, 1\ns_add_u32 s69, s69, s{sRH}\ns_add_u32 s68, s68, s69')
    a(f's_lshl_b32 s68, s68, 6\ns_add_u32 s68, s68, {WS_ZP}\ns_mov_b32 exec_lo, 0x10001\ns_mov_b32 exec_hi, 0x10001')
    a(f'buffer_store_dwordx4 v[112:115], v0, {srd(SWS)}, s68 offen sc1\ns_mov_b64 exec, -1')
    a.poll_lds(8, 5)
    a(f'ds_read_b128 {vr(KV+8,4)}, v3\nds_read_b128 {vr(KV+12,4)}, v3 offset:1024')
    a(f's_lshl_b32 s68, s{sHEAD}, 1\ns_add_u32 s68, s68, s{sRH}\ns_lshl_b32 s79, s68, 14\ns_add_u32 s79, s79, {WS_KVP}')
    a(f's_lshl_b32 s68, s{sRB}, 10\ns_add_u32 s68, s68, s79\ns_waitcnt lgkmcnt(0)')
    for i in range(8): a(f'v_add_f32 v{KV+i}, v{KV+i}, v{KV+8+i}')
    pack(KV, 116, 4)
    a(f'buffer_store_dwordx4 v[116:119], v15, {srd(SWS)}, s68 offen sc1')
    a.stamp(3)
    PQ = 48
    NQ = a.opt('nq', 10)
    for u in range(NQ): phi2(AQ + 2*u, PQ + u, False)
    a('s_waitcnt vmcnt(0)')
    a.check_cleared(14, 13)
    a.arrive(0, sCB, 77, 2, 14)
    a.stamp(4)
    for u in range(NQ, 16): phi2(AQ + 2*u, PQ + u, False)
    SEL = 64
    a('v_and_b32 v7, 15, v0\nv_lshrrev_b32 v8, 4, v0\nv_lshlrev_b32 v9, 2, v8\nv_sub_u32 v12, v7, v9')
    a(f'v_mov_b32 v9, 0x3f80\nv_mov_b32 v10, 0x3f800000\nv_mov_b32 v{SEL+2}, 0\nv_mov_b32 v{SEL+3}, 0')
    for u in range(2):
        a(f'v_cmp_eq_u32 vcc, {2*u}, v12\nv_cmp_eq_u32 s[80:81], {2*u+1}, v12\nv_cndmask_b32 v{SEL+u}, 0, v9, vcc\nv_cndmask_b32 v{SEL+u}, v{SEL+u}, v10, s[80:81]\nv_mov_b32 v{SEL+4+u}, v{SEL+u}')
    a('v_lshlrev_b32 v7, 6, v7\nv_lshl_add_u32 v7, v8, 4, v7')
    a.await_(0, sCB, 77, 2, 14)
    a.stamp(5)
    ZA, PB, SUM, DEN, NUM = 72, 80, 160, 176, 16
    a(f's_lshl_b32 s68, s{sHEAD}, 11\ns_add_u32 s68, s68, {WS_ZP}')
    a(f'buffer_load_dwordx4 {vr(ZA,4)}, v7, {srd(SWS)}, s68 offen sc1\nbuffer_load_dwordx4 {vr(ZA+4,4)}, v7, {srd(SWS)}, s68 offen offset:1024 sc1')
    a(f's_lshl_b32 s69, s{sRB}, 11')
    for p in range(8):
        a(f's_and_b32 s69, s69, 0x3fff\ns_add_u32 s68, s69, s79')
        a(f'buffer_load_dwordx4 {vr(PB+8*p,4)}, v15, {srd(SWS)}, s68 offen sc1\nbuffer_load_dwordx4 {vr(PB+8*p+4,4)}, v15, {srd(SWS)}, s68 offen offset:1024 sc1')
        a('s_add_u32 s69, s69, 2048')
    a.stamp(14)
    a('s_waitcnt vmcnt(16)')
    for mt in range(4): a(mf16(DEN+4*mt, ZA, PQ+4*mt, '0'))
    for mt in range(4): a(mf16(DEN+4*mt, ZA+4, PQ+4*mt))
    den = []
    for mt in range(4):
        d = DEN + 4*mt
        den += [f'v_add_f32 v{d}, v{d}, v{d+1}', f'v_add_f32 v{d+2}, v{d+2}, v{d+3}', f'v_add_f32 v{d}, v{d}, v{d+2}']
    d0, d1, d2, d3 = DEN, DEN+4, DEN+8, DEN+12
    den += [f'v_permlane32_swap_b32 v{d0}, v{d2}', f'v_permlane32_swap_b32 v{d1}, v{d3}', f'v_add_f32 v{d0}, v{d0}, v{d2}', f'v_add_f32 v{d1}, v{d1}, v{d3}',
            f'v_permlane16_swap_b32 v{d0}, v{d1}', f'v_add_f32 v{d0}, v{d0}, v{d1}', f'v_add_f32 v{d0}, s72, v{d0}', f'v_rcp_f32 v{d0}, v{d0}',
            f'v_mov_b32 v{d1}, v{d0}', f'v_permlane16_swap_b32 v{d0}, v{d1}', f'v_mov_b32 v{d2}, v{d0}', f'v_mov_b32 v{d3}, v{d1}',
            f'v_permlane32_swap_b32 v{d0}, v{d2}', f'v_permlane32_swap_b32 v{d1}, v{d3}']
    for p in range(16):
        a(f's_waitcnt vmcnt({15-p})')
        for dt in range(2): a(mf16(SUM+4*dt, SEL+2*dt, PB+4*p, '0' if p == 0 else None))
        if p >= 2:
            for _ in range(2):
                if den: a(den.pop(0))
    assert not den
    a.stamp(15)
    a(f's_lshl_b32 s68, s{sWV}, 10\ns_add_u32 s68, s68, {L_GS+8192}\nv_add_u32 v2, s68, v15')
    a(f's_lshl_b32 s68, s{sHH}, 11\ns_add_u32 s68, s68, {L_GS+8192}\nv_add_u32 v3, s68, v15\nv_add_u32 v5, 16, v5')
    pack(SUM, 112, 4)
    a('ds_write_b128 v2, v[112:115]\nds_write_b32 v4, v6 offset:16')
    a(f's_lshl_b32 s68, s{sRB}, 1\ns_add_u32 s68, s68, s{sRH}\ns_lshl_b32 s80, s68, 17\ns_lshl_b32 s68, s{sHEAD}, 10\ns_add_u32 s80, s80, s68\ns_add_u32 s80, s80, {WS_O}')
    a.poll_lds(9, 5)
    a('ds_read_b128 v[116:119], v3\nds_read_b128 v[120:123], v3 offset:1024\ns_waitcnt lgkmcnt(0)')
    for mt in range(4):
        for et in range(2): a(mf16(NUM+8*mt+4*et, 116+4*et, PQ+4*mt, '0'))
    for mt in range(4):
        n = NUM + 8*mt; o = 124 + 4*mt
        for u in range(4):
            a(f'v_mul_f32 v{n+2*u}, v{n+2*u}, v{DEN+4*mt}\nv_mul_f32 v{n+2*u+1}, v{n+2*u+1}, v{DEN+4*mt}')
            a(f'v_cvt_pk_bf16_f32 v{o+u}, v{n+2*u}, v{n+2*u+1}')
        a(f'buffer_store_dwordx4 {vr(o,4)}, v15, {srd(SWS)}, s80 offen sc1\ns_add_u32 s80, s80, 32768')
    a.stamp(6)
    a('v_lshrrev_b32 v7, 2, v0\nv_lshlrev_b32 v7, 7, v7\nv_and_b32 v8, 3, v0\nv_lshl_add_u32 v7, v8, 3, v7\nv_bfe_u32 v8, v0, 3, 2')
    a(f'v_lshl_add_u32 v{AD}, v8, 5, v7')
    for ct in range(1, 4): a(f'v_xor_b32 v{AD+ct}, {ct<<5}, v{AD}')
    for sg in (1, 2):
        for ct in range(4): a(f'v_add_u32 v{AD+4*sg+ct}, {sg<<16}, v{AD+ct}')
    a(f'v_add_u32 v9, {L_FLW}, v13')
    a(f's_lshl_b32 s78, s{sG}, 2\ns_add_u32 s78, s78, s{sWV}\ns_lshl_b32 s79, s78, 16\ns_add_u32 s79, s79, {WS_O}\ns_lshl_b32 s80, s{sJ}, 11\nv_add_u32 v12, 32768, v15')
    a('s_waitcnt vmcnt(0)')
    a.arrive(1, sRB, 77, 10, 14)
    a.stamp(7)
    a.await_(1, sG, 77, 10, 14)
    a.stamp(13)
    ACC, AR, BF = 16, 48, (80, 96)
    def aload(i):
        o = []
        if i % 2 == 0: o.append(f's_add_u32 s81, s80, s79\ns_add_u32 s80, s80, 2048\ns_and_b32 s80, s80, 0x7fff')
        for st in range(2): o.append(f'buffer_load_dwordx4 {vr(AR+8*(i%4)+4*st,4)}, v{(15,12)[st]}, {srd(SWS)}, s81 offen offset:{1024*(i%2)} {"" if "plaino" in a.opts else "sc1"}')
        return o
    def bread(i):
        o = []
        for ct in range(4):
            for r2 in range(2):
                off = wo_blk(i >> 1) + (i & 1)*4096 + r2*2048
                o.append(f'ds_read_b64_tr_b16 {vr(BF[i&1]+4*ct+2*r2,2)}, v{AD+4*(off>>16)+ct} offset:{off & 0xffff}')
        return o
    for i in range(4):
        for l in aload(i): a(l)
    a.poll_lds(14, 9, 1)
    if 'waitall' in a.opts:
        a('v_add_u32 v11, 16, v9'); a.poll_lds(14, 11, 1)
    a.stamp(8)
    if 'cp3' in a.opts: a.cstamp(11)
    for l in bread(0): a(l)
    for i in range(32):
        if i == 23:
            a('v_add_u32 v9, 16, v9'); a.poll_lds(14, 9, 1)
        a(f's_waitcnt vmcnt({min(6, 2*(31-i))}) lgkmcnt(0)')
        rd = bread(i+1) if i < 31 else []
        k = 0
        for ct in range(4):
            for st in range(2):
                a(mf16(ACC+16*st+4*ct, BF[i&1]+4*ct, AR+8*(i%4)+4*st, '0' if i == 0 else None))
                for _ in range(2 if k < 3 else 1):
                    if rd: a(rd.pop(0))
                k += 1
        if i + 4 < 32 and 'noload' not in a.opts:
            for l in aload(i+4): a(l)
    a.stamp(9)
    if 'cp3' in a.opts: a.cstamp(12)
    a(f'v_and_b32 v2, 15, v0\nv_lshlrev_b32 v2, 12, v2\nv_bfe_u32 v3, v0, 4, 1\nv_lshl_add_u32 v2, v3, 5, v2\nv_lshrrev_b32 v3, 5, v0\nv_lshl_add_u32 v2, v3, 4, v2')
    a(f's_lshl_b32 s68, s78, 17\ns_lshl_b32 s69, s{sJ}, 7\ns_add_u32 s68, s68, s69\ns_add_u32 s69, s68, 65536')
    for A in range(2):
        for st in range(2):
            o = 48 + 8*A + 4*st
            pack(ACC+16*st+8*A, o, 4)
            a(f'v_permlane16_swap_b32 v{o}, v{o+2}\nv_permlane16_swap_b32 v{o+1}, v{o+3}')
            a(f'buffer_store_dwordx4 {vr(o,4)}, v2, {srd(SOUT)}, s{68+st} offen offset:{64*A} {OUTF}')
    if a.stamps:
        a('s_waitcnt vmcnt(0)'); a.stamp(10); a.dump_stamps(0)
    a.label('L_end')
    a('s_endpgm')

def s_path(a):
    sSLOT, sCNT, sXO, sWOF, sM, sCH, sUB, sTB = 73, 74, 75, 76, 77, 78, 79, 80
    YF_ = 'sc1' if 'ysc1' in a.opts else 'nt' if 'ynt' in a.opts else ''
    a(f's_sub_u32 s{sWV}, s{sWV}, 4')
    a('v_lshrrev_b32 v3, 3, v0\nv_and_b32 v4, 7, v0')
    a(f's_lshl_b32 s68, s{sRB}, 7\ns_lshl_b32 s69, s{sWV}, 5\ns_add_u32 s68, s68, s69\nv_add_u32 v5, s68, v3\nv_lshlrev_b32 v5, 11, v5')
    a('v_lshrrev_b32 v6, 4, v0\nv_xor_b32 v6, v6, v4\nv_lshl_add_u32 v10, v6, 4, v5\nv_xor_b32 v11, 64, v10\nv_add_u32 v11, 16384, v11\nv_add_u32 v12, 32768, v10\nv_add_u32 v13, 32768, v11')
    a(f's_lshl_b32 s69, s{sWV}, 4\nv_add_u32 v5, s69, v3\nv_mul_u32_u24 v5, 6144, v5\nv_bfe_u32 v6, v0, 4, 1\nv_lshlrev_b32 v6, 1, v6\nv_xor_b32 v16, v6, v4')
    a(f'v_lshl_add_u32 v5, v16, 4, v5\ns_lshl_b32 s68, s{sCB}, 7\nv_add_u32 v14, s68, v5\nv_xor_b32 v15, 64, v14\nv_add_u32 v15, {8*6144}, v15')
    CH = a.opt('c', 4)
    a(f's_mul_i32 s81, s{sXCD}, {a.opt("x", 2)}\ns_lshl_b32 s{sM}, s{sWV}, 12\ns_lshl_b32 s{sSLOT}, s{sWV}, 11')
    a(f's_mul_i32 s{sUB}, s{sWV}, {USZ}\ns_add_u32 s{sUB}, s{sUB}, {L_U+512}\ns_mul_i32 s{sTB}, s{sWV}, {TABSZ}\ns_add_u32 s{sTB}, s{sTB}, {L_TAB}')
    a(f's_lshl_b32 s{sCH}, s{sG}, 6\ns_lshl_b32 s68, s{sJ}, 2\ns_add_u32 s{sCH}, s{sCH}, s68\ns_add_u32 s{sCH}, s{sCH}, s{sWV}')
    a.srds()
    def issue(st, bg, per):
        sl = SLOT*(st % 3)
        a(f's_add_u32 s68, s{sROT}, {st}\ns_and_b32 s68, s68, {CH-1}\ns_add_u32 s68, s68, s81\ns_add_u32 s68, s68, {st & (16-CH)}\ns_and_b32 s68, s68, 15')
        a(f's_lshl_b32 s{sXO}, s68, 7\ns_mul_i32 s{sWOF}, s68, {64*6144}')
        xs = [f's_add_u32 m0, s{sM}, {sl+1024*p}\nbuffer_load_dwordx4 v{10+p}, {srd(SX)}, s{sXO} offen lds' for p in range(4)]
        wsx = [f's_add_u32 m0, s{sSLOT}, {sl+16384+8192*seg+1024*p}\ns_add_u32 s68, s{sWOF}, {2048*seg}\nbuffer_load_dwordx4 v{14+p}, {srd(SW)}, s68 offen lds' for seg in (1, 2, 0) for p in range(2)]
        for c in 'xxxxwwwwww':
            d = (xs if c == 'x' else wsx).pop(0)
            if 'nodma' not in a.opts: a(d)
            for _ in range(per):
                if bg: a(bg.pop(0))
    PR = 20
    DT, KA, FR = 29, 48, 64
    AR_, AI, BR, BI, CR, CI = 32, 33, 34, 35, 36, 37
    E1, E8, E256, TT = 38, 40, 42, 44
    XS, YC = 192, 210
    bg = []
    def b(t): bg.extend(t.split('\n'))
    def mrow(half, rho): return 8*(rho >> 2) + 4*half + (rho & 3)
    base_of = {}
    seg1 = [0,0,2,4,4,4,6,8,8]
    for half in range(2):
        for rho in range(9): base_of[mrow(half, rho)] = rho if half == 0 else 256 + seg1[rho]
        for k in range(3): base_of[mrow(half, 9+k)] = 512 + 256*half + 4*k
        for k in range(2):
            base_of[mrow(half, 12+k)] = 1024 + 256*half + 8*k
            base_of[mrow(half, 14+k)] = 1536 + 256*half + 8*k
    pos = {}
    for m in range(32): pos.setdefault(base_of[m], m)
    hi = struct.unpack('<f', struct.pack('<I', f2u(LOG2E) & 0xffffff00))[0]
    b(f'v_lshlrev_b32 v26, 16, v26\nv_mul_f32 v30, {f2u(hi)}, v26\nv_rndne_f32 v31, v30\nv_sub_f32 v30, v30, v31\nv_fmac_f32 v30, {f2u(LOG2E-hi)}, v26')
    b(f'v_exp_f32 v30, v30\nv_cvt_i32_f32 v31, v31\nv_ldexp_f32 v30, v30, v31\nv_cvt_pk_bf16_f32 v30, v30, v30\nv_lshlrev_b32 v{DT}, 16, v30')
    def cmul(d, x, e):
        b(f'v_mul_f32 v{TT}, v{x+1}, v{e+1}\nv_mul_f32 v{TT+1}, v{x+1}, v{e}\nv_fma_f32 v{d+1}, v{x}, v{e+1}, v{TT+1}\nv_fma_f32 v{d}, v{x}, v{e}, -v{TT}')
    for ps in range(2):
        def put(x, row, neg): b(f'v_cvt_pk_bf16_f32 v{FR+64*ps+32*neg+row}, v{x}, {"-" if neg else ""}v{x+1}')
        for i in range(6): b(f'v_lshlrev_b32 v{32+i}, 16, v{PR+i}' if ps == 0 else f'v_and_b32 v{32+i}, 0xffff0000, v{PR+i}')
        for r in (AR_, AI, BR, BI): b(f'v_mul_f32 v{r}, v{DT}, v{r}')
        b(f'v_mul_f32 v{AR_}, {f2u(LOG2E)}, v{AR_}\nv_mul_f32 v{AI}, 0.15915494, v{AI}')
        cmul(XS, BR, CR)
        for L, e in ((8, E8), (1, E1), (256, E256)):
            if L == 1: b(f'v_exp_f32 v30, v{AR_}\nv_fract_f32 v31, v{AI}')
            else: b(f'v_mul_f32 v30, {f2u(float(L))}, v{AR_}\nv_mul_f32 v31, {f2u(float(L))}, v{AI}\nv_exp_f32 v30, v30\nv_fract_f32 v31, v31')
            b(f'v_cos_f32 v{e}, v31\nv_sin_f32 v{e+1}, v31\nv_mul_f32 v{e}, v{e}, v30\nv_mul_f32 v{e+1}, v{e+1}, v30')
        b(f'v_mov_b32 v{FR+64*ps}, 0x3f80')
        put(E8, 1, 0)
        cmul(YC, E8, E8); put(YC, 2, 0)
        for n in range(3, 32): cmul(YC, YC, E8); put(YC, n, 0)
        put(XS, pos[0], 1)
        for k in range(1, 9): cmul(XS+2*k, XS+2*k-2, E1); put(XS+2*k, pos[k], 1)
        for blk in range(1, 8):
            ks = (0,2,4,6,8) if blk == 1 else (0,4,8) if blk < 4 else (0,8)
            for k in ks: cmul(XS+2*k, XS+2*k, E256); put(XS+2*k, pos[256*blk+k], 1)
    per = a.opt('per', 5)
    issue(0, [], 0); issue(1, [], 0)
    a(f's_lshl_b32 s68, s{sCH}, 8\nv_lshlrev_b32 v5, 2, v0\nv_add_u32 v5, s68, v5\ns_lshl_b32 s68, s{sCH}, 1\nv_mov_b32 v6, s68\nv_and_b32 v7, 3, v0\nv_lshlrev_b32 v7, 2, v7')
    for i in range(6): a(f'global_load_dword v{PR+i}, v5, s[{12+2*i}:{13+2*i}]')
    a(f'global_load_ushort v26, v6, s[24:25]\nglobal_load_ushort v27, v6, s[26:27]')
    a('s_waitcnt vmcnt(18)\ns_barrier')
    pre = []
    pre += f's_lshl_b32 s70, s{sJ}, 7\ns_lshl_b32 s71, s{sWV}, 5\ns_add_u32 s71, s70, s71\nv_add_u32 v5, s71, v3\nv_lshlrev_b32 v5, 11, v5\nv_lshl_add_u32 v8, v16, 4, v5\nv_xor_b32 v9, 64, v8'.split('\n')
    pre += f'v_lshrrev_b32 v6, 4, v0\nv_lshlrev_b32 v6, 1, v6\nv_xor_b32 v6, v6, v4\nv_lshlrev_b32 v17, 11, v3\nv_lshl_add_u32 v17, v6, 4, v17\nv_add_u32 v17, s70, v17'.split('\n')
    pre += f'v_and_b32 v5, 31, v0\nv_lshrrev_b32 v6, 5, v0\nv_lshlrev_b32 v6, 4, v6\nv_add_u32 v6, s{sTB}, v6\nv_mul_u32_u24 v2, 272, v5\nv_add_u32 v18, v2, v6\nv_mov_b32 v19, v18'.split('\n')
    for m in range(32):
        if pos[base_of[m]] != m:
            pre += f'v_cmp_eq_u32 vcc, {m}, v5\nv_add_u32 v2, {272*pos[base_of[m]]}, v6\nv_cndmask_b32 v19, v19, v2, vcc'.split('\n')
    pre += [f'v_mov_b32 v{KA+i}, 0' for i in range(1, 16)]
    issue(2, pre, 5)
    assert not pre
    for st in range(3, 16):
        a('s_waitcnt vmcnt(10)\ns_barrier')
        issue(st, bg, per)
    a(f's_lshl_b32 s68, s{sG}, 7')
    for p in range(4):
        a(f's_add_u32 m0, s{sUB}, {1024*p}\nbuffer_load_dwordx4 v{8+(p&1)}, {srd(SU)}, s68 offen lds\ns_add_u32 s68, s68, 16384')
    a(f'global_load_dword v28, v7, s[30:31] sc1')
    a('s_waitcnt vmcnt(15)\ns_barrier')
    print('background left', len(bg), file=sys.stderr)
    for l in bg: a(l)
    a(f'v_cmp_eq_u32 vcc, 0, v0\nv_lshlrev_b32 v27, 16, v27\nv_lshlrev_b32 v15, 4, v0\nv_cndmask_b32 v{KA}, 0, v27, vcc')
    a('v_lshrrev_b32 v5, 4, v0\nv_bfe_u32 v6, v0, 2, 2\nv_lshl_add_u32 v6, v5, 3, v6\nv_lshlrev_b32 v6, 7, v6\nv_and_b32 v8, 3, v0\nv_lshl_add_u32 v6, v8, 3, v6')
    a(f'v_bfe_u32 v8, v0, 3, 2\nv_lshl_add_u32 v6, v8, 5, v6\nv_add_u32 v9, s{sUB}, v6')
    for cq in range(1, 4): a(f'v_xor_b32 v{9+cq}, {cq<<5}, v9')
    a(f'v_and_b32 v8, 15, v0\nv_lshlrev_b32 v8, 12, v8\nv_lshl_add_u32 v8, v5, 4, v8')
    a(f's_lshl_b32 s68, s{sG}, 8\ns_lshl_b32 s69, s{sJ}, 4\ns_add_u32 s68, s68, s69\ns_lshl_b32 s69, s{sWV}, 2\ns_add_u32 s81, s68, s69')
    a(f's_lshl_b32 s70, s{sWV}, 10\ns_lshl_b32 s71, s{sJ}, 3\ns_add_u32 s71, s71, s{sWV}\ns_lshl_b32 s71, s71, 14')
    TOFF = 16384
    a(f's_sub_u32 s74, s{sTB}, {TOFF}')
    a(f's_lshl_b32 s68, s{sG}, 18\ns_lshl_b32 s69, s{sJ}, 8\ns_add_u32 s68, s68, s69\ns_lshl_b32 s69, s{sWV}, 6\ns_add_u32 s68, s68, s69\ns_add_u32 s68, s68, {WS_UT}')
    a('s_waitcnt vmcnt(5)\ns_barrier')
    a.stamp(1)
    a('s_waitcnt vmcnt(0)')
    a.stamp(14)
    for cq in range(4):
        for r2 in range(2): a(f'ds_read_b64_tr_b16 {vr(32+4*cq+2*r2,2)}, v{9+cq} offset:{512*r2}')
    for cq in range(4):
        a(f's_waitcnt lgkmcnt({6-2*cq})\nbuffer_store_dwordx4 {vr(32+4*cq,4)}, v8, {srd(SWS)}, s68 offen sc1\ns_add_u32 s68, s68, 65536')
    a.stamp(2)
    a.check_cleared(28, 7)
    N1 = a.opt('n1', 14); nd = [0]; nw = [0]; every = a.opt('ev', 8)
    def wo_piece():
        n = nd[0]; nd[0] += 1
        a(f's_add_u32 m0, s70, {wo_blk(n >> 1) + 4096*(n & 1)}\ns_and_b32 s71, s71, 0x1fffff\nbuffer_load_dwordx4 v17, {srd(SWO)}, s71 offen lds\ns_add_u32 s71, s71, 65536\ns_mov_b32 m0, s74')
    a('s_mov_b32 m0, s74')
    for q in range(4):
        rows = range(32) if q % 2 == 0 else sorted(set(pos.values()))
        for r in rows:
            if nw[0] % every == 0 and nd[0] < N1: wo_piece()
            nw[0] += 1
            a(f'ds_write_addtid_b32 v{FR+32*q+r} offset:{TOFF + 272*r}')
        for k in range(8): a(f'ds_read_b128 {vr(FR+32*q+4*k,4)}, v{18 + (q & 1)} offset:{32*k}')
        if q == a.opt('aq', 1):
            a(f's_waitcnt vmcnt({nd[0]})')
            a.arrive(2, sG, 73, 8, 9)
            a.stamp(3)
    while nd[0] < N1: wo_piece()
    a(f'v_add_u32 v6, {L_FLG}, v7')
    a.poll_lds(9, 6, 1)
    for ps in range(2):
        for k in range(8): a(f'v_mfma_f32_32x32x16_bf16 {vr(KA,16)}, {vr(FR+64*ps+32+4*k,4)}, {vr(FR+64*ps+4*k,4)}, {vr(KA,16)}')
    a.stamp(4)
    a.await_(2, sG, 73, 8, 9)
    a(f's_lshl_b32 s68, s{sCH}, 12\ns_add_u32 s68, s68, {WS_UT}\ns_mov_b32 m0, s{sUB}')
    for p in range(4): a(f'buffer_load_dwordx4 v15, {srd(SWS)}, s68 offen offset:{1024*p} sc1 lds')
    a.stamp(5); a.stamp(15)
    CB = 4160
    a(f's_add_u32 s68, s{sTB}, {4080-3072}\nv_sub_u32 v5, s68, v15')
    a('v_and_b32 v6, 1, v0\nv_cmp_eq_u32 vcc, 1, v6')
    def chunk(g, copy, pairs, t):
        for i, (lo, hi_) in enumerate(pairs): a(f'v_cvt_pk_bf16_f32 v{t+i}, v{lo}, v{hi_}')
        a(f'ds_write_b128 v5, {vr(t,4)} offset:{CB*copy + 1024*(3-g)}')
    k = lambda r: KA + r
    chunk(0, 0, [(k(7),k(6)), (k(5),k(4)), (k(3),k(2)), (k(1),k(0))], 64)
    chunk(0, 1, [(k(8),k(7)), (k(6),k(5)), (k(4),k(3)), (k(2),k(1))], 68)
    chunk(1, 0, [(k(11),k(11)), (k(10),k(10)), (k(10),k(9)), (k(9),k(9))], 72)
    chunk(1, 1, [(k(11),k(11)), (k(11),k(10)), (k(10),k(10)), (k(9),k(9))], 76)
    for g in (2, 3):
        z0, z8 = k(8+2*g), k(9+2*g); X = 30 + (g & 1)
        a(f'v_cndmask_b32 v{X}, v{z0}, v{z8}, vcc')
        chunk(g, 0, [(z8,z8), (z8,X), (z0,z0), (z0,z0)], 64+8*g)
        chunk(g, 1, [(z8,z8), (z8,z8), (X,z0), (z0,z0)], 68+8*g)
    a(f'v_mov_b32 v8, 0\nv_cvt_pk_bf16_f32 v9, v{KA}, v8\nv_cmp_eq_u32 vcc, 0, v0\nv_and_b32 v6, 7, v0\nv_lshlrev_b32 v6, 2, v6\nv_cndmask_b32 v9, 0, v9, vcc')
    a(f'v_cmp_gt_u32 vcc, 8, v0\nv_mov_b32 v11, {CB}\nv_add_u32 v6, s{sTB}, v6\nv_cndmask_b32 v11, 0, v11, vcc\nv_add_u32 v6, v6, v11\ns_mov_b64 exec, 0xffff\nds_write_b32 v6, v9 offset:4096\ns_mov_b64 exec, -1')
    CA, AF, BF = 32, 64, 96
    VA = (10, 11, 12, 13); VBu = 14
    a('v_and_b32 v5, 15, v0\nv_lshrrev_b32 v6, 4, v0\nv_and_b32 v8, 1, v0\nv_add_u32 v9, v5, v8\nv_lshlrev_b32 v9, 1, v9\nv_lshlrev_b32 v11, 4, v6\nv_sub_u32 v9, v11, v9')
    a(f'v_xor_b32 v8, 1, v8\nv_mul_u32_u24 v8, {CB}, v8\nv_add_u32 v9, v9, v8\ns_add_u32 s68, s{sTB}, {2*(2048-16)-512}\nv_add_u32 v{VA[0]}, s68, v9')
    for i in range(1, 4): a(f'v_subrev_u32 v{VA[i]}, {1024*i}, v{VA[0]}')
    a(f'v_lshlrev_b32 v5, 5, v5\nv_lshl_add_u32 v5, v6, 4, v5\ns_sub_u32 s68, s{sUB}, 32\nv_add_u32 v{VBu}, s68, v5')
    def rdA(D):
        o = 128*(1 - (D & 1))
        return [f'ds_read2_b32 {vr(AF+4*D,2)}, v{VA[D>>1]} offset0:{o} offset1:{o+1}', f'ds_read2_b32 {vr(AF+4*D+2,2)}, v{VA[D>>1]} offset0:{o+2} offset1:{o+3}']
    def rdB(t): return f'ds_read_b128 {vr(BF+4*t,4)}, v{VBu} offset:{512*t}'
    for D in range(7, 0, -1):
        for l in rdA(D): a(l)
    for i in range(32): a(f'v_mov_b32 v{CA+i}, 0')
    a(f's_lshl_b32 s68, s{sWV}, 2\ns_add_u32 s68, s68, {L_FLW}\nv_mov_b32 v8, s68\nv_mov_b32 v9, 1')
    a(f's_add_u32 s75, s{sJ}, s{sWV}\ns_add_u32 s75, s75, 12\ns_and_b32 s75, s75, 15\ns_lshl_b32 s75, s75, 17\ns_lshl_b32 s68, s{sJ}, 7\nv_lshl_add_u32 v16, v0, 11, s68')
    a('s_waitcnt vmcnt(0) lgkmcnt(0)')
    a.stamp(6)
    for t in range(8): a(rdB(t))
    for l in rdA(0): a(l)
    a('s_mov_b32 s72, 0')
    a('.p2align 3')
    a.label('L_conv')
    a(f'v_subrev_u32 v{VA[3]}, 64, v{VA[3]}\ns_waitcnt lgkmcnt(9)')
    waits = {6: 10, 5: 11, 4: 6}
    fill = {(6,0): f'v_subrev_u32 v{VA[2]}, 64, v{VA[2]}\nv_subrev_u32 v{VA[1]}, 64, v{VA[1]}', (5,0): f'v_subrev_u32 v{VA[0]}, 64, v{VA[0]}\nv_subrev_u32 v{VBu}, 64, v{VBu}', (5,1): 's_add_u32 s72, s72, 1\ns_nop 0'}
    assert N1 == 14
    dma = f's_mov_b32 m0, s70\ns_and_b32 s71, s71, 0x1fffff\nbuffer_load_dwordx4 v17, {srd(SWO)}, s71 offen lds\ns_add_u32 s71, s71, 65536\ns_add_u32 s70, s70, 4096'
    for D in (3, 1):
        L = a.newlabel('nodma')
        fill[(D, 1)] = f's_cmp_lt_u32 s72, 4\ns_cbranch_scc1 {L}\n{dma}\n{L}:'
    if 'nopf2' not in a.opts:
        L = a.newlabel('nopf')
        fill[(2, 1)] = f's_cmp_lg_u32 s72, 3\ns_cbranch_scc1 {L}\nbuffer_load_dword v251, v16, {srd(SWO)}, s75 offen\n{L}:'
    for D in range(7, -1, -1):
        if D in waits: a(f's_waitcnt lgkmcnt({waits[D]})\ns_nop 0')
        for t in range(8 - D):
            a(mf16(CA+4*(D+t), AF+4*D, BF+4*t))
            if D == 0: a(rdB(t))
            if (D, t) in fill: a(fill[(D, t)])
        for l in rdA(D): a(l)
    a('s_cmp_lt_u32 s72, 8\ns_cbranch_scc1 L_conv')
    a('s_waitcnt lgkmcnt(0)')
    a.stamp(7); a.stamp(13)
    a('v_bfe_u32 v5, v0, 2, 3\nv_lshlrev_b32 v5, 13, v5\nv_lshrrev_b32 v6, 5, v0\nv_lshl_add_u32 v5, v6, 12, v5')
    a(f'v_and_b32 v6, 3, v0\ns_bfe_u32 s68, s{sJ}, 0x20001\nv_xor_b32 v6, s68, v6\nv_lshl_add_u32 v5, v6, 4, v5')
    a(f's_lshl_b32 s68, s{sG}, 18\ns_and_b32 s69, s{sCH}, 63\ns_lshl_b32 s69, s69, 6\ns_add_u32 s68, s68, s69\ns_add_u32 s68, s68, {WS_YT}')
    for tp in range(4):
        o = 64 + 4*tp; c0 = CA + 8*tp
        for i in range(4): a(f'v_cvt_pk_bf16_f32 v{o+i}, v{c0+2*i}, v{c0+2*i+1}')
        a(f'v_permlane16_swap_b32 v{o}, v{o+2}\nv_permlane16_swap_b32 v{o+1}, v{o+3}')
        a(f'buffer_store_dwordx4 {vr(o,4)}, v5, {srd(SWS)}, s68 offen sc1\ns_add_u32 s68, s68, 65536')
    a('s_waitcnt vmcnt(4)\nds_write_b32 v8, v9')
    for p in range(8):
        a(f's_add_u32 m0, s{sTB}, {1024*p}\nbuffer_load_dwordx4 v17, {srd(SWO)}, s75 offen lds\ns_add_u32 s75, s75, 16384')
    a('s_waitcnt vmcnt(8)')
    a.arrive(3, sG, 73, 10, 11)
    a.stamp(8)
    a('s_waitcnt vmcnt(0)\nds_write_b32 v8, v9 offset:16')
    if 'noy' in a.opts:
        a('s_waitcnt lgkmcnt(0)'); a.dump_stamps(1); a('s_endpgm')
    a('v_and_b32 v5, 3, v0\nv_lshrrev_b32 v6, 5, v0\nv_lshl_add_u32 v6, v6, 2, v5\nv_lshlrev_b32 v6, 9, v6\nv_bfe_u32 v13, v0, 2, 2\nv_lshl_add_u32 v6, v13, 6, v6')
    a(f'v_lshl_add_u32 v6, v5, 4, v6\nv_bfe_u32 v12, v0, 4, 1\nv_lshl_add_u32 v6, v12, 3, v6\nv_add_u32 v20, s{sUB}, v6')
    for i in range(1, 4): a(f'v_xor_b32 v{20+i}, {16*i}, v20')
    a('v_lshl_add_u32 v5, v12, 2, v5\nv_lshlrev_b32 v5, 12, v5\nv_lshrrev_b32 v6, 5, v0\nv_lshl_add_u32 v6, v6, 2, v13\nv_lshl_add_u32 v5, v6, 4, v5')
    a.await_(3, sG, 73, 10, 11, scalar='vy' not in a.opts)
    a.stamp(9)
    a(f's_lshl_b32 s68, s81, 10\ns_add_u32 s68, s68, {WS_YT}\ns_mov_b32 m0, s{sUB}')
    for p in range(4): a(f'buffer_load_dwordx4 v15, {srd(SWS)}, s68 offen offset:{1024*p} sc1 lds')
    a(f's_lshl_b32 s68, s{sJ}, 19\ns_lshr_b32 s69, s{sWV}, 1\ns_lshl_b32 s69, s69, 18\ns_add_u32 s68, s68, s69\ns_and_b32 s69, s{sWV}, 1\ns_lshl_b32 s69, s69, 15\ns_add_u32 s68, s68, s69\ns_lshl_b32 s69, s{sG}, 7\ns_add_u32 s68, s68, s69\ns_add_u32 s68, s68, 2048')
    a('s_waitcnt vmcnt(0)')
    for i in range(4):
        for r2 in range(2): a(f'ds_read_b64_tr_b16 {vr(32+4*i+2*r2,2)}, v{20+i} offset:{256*r2}')
    for i in range(4):
        a(f's_waitcnt lgkmcnt({6-2*i})\nbuffer_store_dwordx4 {vr(32+4*i,4)}, v5, {srd(SOUT)}, s68 offen {YF_}\ns_add_u32 s68, s68, 65536')
    if a.stamps:
        a('s_waitcnt vmcnt(0)'); a.stamp(10); a.dump_stamps(1)
    a('s_endpgm')

HEADER = open('concat_heads__linear_attn_block__ssm_conv_s4__prompt.s.ref').read().split('; Override')[0].rstrip('\n').split('\n')
def build(stamps=False, code_bytes=16384, verbose=False, opts=()):
    a = K(stamps, opts)
    prologue(a); s_path(a); g_path(a, code_bytes)
    body = hazard.fix(a.text(), verbose)
    return file_text(HEADER + ['; @launch grid=(256,1,1) block=(512,1,1) lds=163840'], [(NAME, body + '\n', kernel_desc(NAME, 256, 102, 256))])
def text_size(src):
    import subprocess, tempfile, re
    d = tempfile.mkdtemp(); open(d + '/a.s', 'w').write(src)
    subprocess.run(['clang', '-x', 'assembler', '-target', 'amdgcn-amd-amdhsa', '-mcpu=gfx950', '-c', d + '/a.s', '-o', d + '/a.o'], check=True)
    o = subprocess.run(['llvm-readelf', '-S', d + '/a.o'], capture_output=True, text=True).stdout
    return int(re.search(r'\.text\s+PROGBITS\s+\S+\s+\S+\s+(\S+)', o).group(1), 16)
if __name__ == '__main__':
    out = sys.argv[1]; stamps = 'stamps' in sys.argv
    n = text_size(build(stamps, opts=sys.argv[2:]))
    print(out, 'code bytes', n)
    open(out, 'w').write(build(stamps, code_bytes=n, verbose='-v' in sys.argv, opts=sys.argv[2:]))
```
